```python
import torch

def _softmax(x, axis=-1):
    return torch.softmax(x, dim=axis)
def _gelu(x):
    return torch.nn.functional.gelu(x, approximate="tanh")
def _silu(x):
    return torch.nn.functional.silu(x)
def _sigmoid(x):
    return torch.sigmoid(x)
def _layernorm(x, axis=-1, eps=1e-5):
    m = x.mean(dim=axis, keepdim=True)
    v = x.var(dim=axis, keepdim=True, unbiased=False)
    return (x - m) / torch.sqrt(v + eps)
def _scatter_add(tgt, idx, src, axis=0):
    return tgt.clone().index_add_(axis, idx, src)
def _segment_sum(src, seg, n):
    out = torch.zeros((n,) + src.shape[1:], dtype=src.dtype)
    return out.index_add_(0, seg, src)
def _pad(x, pw):
    flat = tuple(v for pair in reversed(pw) for v in pair)
    return torch.nn.functional.pad(x, flat)

kernel_name = 'gated_mix__spectral_gfnet__ssm_conv_s4__prompt'

def setup_inputs():

    _w = (lambda a: (lambda t: t.to(torch.bfloat16) if t.is_floating_point() else t)(torch.as_tensor(a)))
    def _A_setup():
        B, S, D = 1, 2048, 448
        Df = D // 2 + 1
        return {
            "x": _w((lambda *s: torch.randn(*s, dtype=torch.bfloat16) * 0.05)(B, S, D)),
            "w_r": _w((lambda *s: torch.randn(*s, dtype=torch.bfloat16) * 0.8)(S, Df) * 0.02),
            "w_i": _w((lambda *s: torch.randn(*s, dtype=torch.bfloat16) * 0.8)(S, Df) * 0.02),
        }
    _A_in = _A_setup()

    def _B_setup():
        B, L, D, N = 1, 2048, 448, 256
        A_re = -(lambda _x: torch.exp(torch.as_tensor(_x)))((lambda *s: torch.randn(*s, dtype=torch.bfloat16) * 3.2)(D, N))
        A_im = torch.pi * (lambda *s: torch.randn(*s, dtype=torch.bfloat16) * 0.05)(D, N)
        B_re = (lambda *s: torch.randn(*s, dtype=torch.bfloat16) * 0.05)(D, N)
        B_im = (lambda *s: torch.randn(*s, dtype=torch.bfloat16) * 0.05)(D, N)
        C_re = (lambda *s: torch.randn(*s, dtype=torch.bfloat16) * 0.05)(D, N)
        C_im = (lambda *s: torch.randn(*s, dtype=torch.bfloat16) * 0.1)(D, N)
        log_dt = (lambda *s: torch.randn(*s, dtype=torch.bfloat16) * 0.05)(D) * 0.5 - 4.0
        Dskip = (lambda *s: torch.randn(*s, dtype=torch.bfloat16) * 0.05)(D)
        return {
            "u": _w((lambda *s: torch.randn(*s, dtype=torch.bfloat16) * 0.05)(B, L, D)),
            "A_re": _w(A_re),
            "A_im": _w(A_im),
            "B_re": _w(B_re),
            "B_im": _w(B_im),
            "C_re": _w(C_re),
            "C_im": _w(C_im),
            "log_dt": _w(log_dt),
            "Dskip": _w(Dskip),
        }
    _B_in = _B_setup()

    return {
        "A_x": _A_in["x"],
        "A_w_r": _A_in["w_r"],
        "A_w_i": _A_in["w_i"],
        "B_u": _B_in["u"],
        "B_A_re": _B_in["A_re"],
        "B_A_im": _B_in["A_im"],
        "B_B_re": _B_in["B_re"],
        "B_B_im": _B_in["B_im"],
        "B_C_re": _B_in["C_re"],
        "B_C_im": _B_in["C_im"],
        "B_log_dt": _B_in["log_dt"],
        "B_Dskip": _B_in["Dskip"],
        "gate_w": _w((lambda *s: torch.randn(*s, dtype=torch.bfloat16) * 0.05)(448) * 16.0),
    }

def reference(A_x, A_w_r, A_w_i, B_u, B_A_re, B_A_im, B_B_re, B_B_im, B_C_re, B_C_im, B_log_dt, B_Dskip, gate_w):
    def _A_ref(x, w_r, w_i):
        B, S, D = x.shape
        X = (lambda x, axes=(-2,-1): torch.fft.rfft2(x.float(), dim=axes))(x, axes=(-2, -1))
        W = w_r + 1j * w_i
        X = X * W
        y = (lambda x, s, axes=(-2,-1): torch.fft.irfft2(x, s=s, dim=axes).to(torch.bfloat16))(X, (S, D), axes=(-2, -1))
        return y

    def _B_ref(u, A_re, A_im, B_re, B_im, C_re, C_im, log_dt, Dskip):
        Bsz, L, D = u.shape
        dt = torch.exp(log_dt)[:, None]
        A = A_re + 1j * A_im
        Bc = B_re + 1j * B_im
        Cc = C_re + 1j * C_im
        logdA = dt * A
        dB = dt * Bc
        l = (lambda x, dt: x.to(dt))(torch.arange(L), A_re.dtype)
        P = torch.exp(logdA[:, :, None] * l[None, None, :])
        K = torch.einsum("dn,dnl,dn->dl", Cc, P, dB).real
        L2 = 2 * L
        Kp = _pad(K, ((0, 0), (0, L)))
        up = (lambda x, *d: x.permute(*d))(u, 0, 2, 1)
        up = _pad(up, ((0, 0), (0, 0), (0, L)))
        Kf = (lambda x, axes=(-2,-1): torch.fft.rfft2(x.float(), dim=axes))(Kp[:, None, :], axes=(-2, -1))
        Uf = (lambda x, axes=(-2,-1): torch.fft.rfft2(x.float(), dim=axes))(up[:, :, None, :], axes=(-2, -1))
        Yf = Uf * Kf[None, :, :, :]
        y = (lambda x, s, axes=(-2,-1): torch.fft.irfft2(x, s=s, dim=axes).to(torch.bfloat16))(Yf, (1, L2), axes=(-2, -1))[:, :, 0, :L]
        y = (lambda x, *d: x.permute(*d))(y, 0, 2, 1) + u * Dskip[None, None, :]
        return y

    x = A_x
    g = _sigmoid((x * gate_w).sum(-1, keepdims=True))
    a = _A_ref(x, A_w_r, A_w_i)
    b = _B_ref(x, B_A_re, B_A_im, B_B_re, B_B_im, B_C_re, B_C_im, B_log_dt, B_Dskip)
    return g * a + (1 - g) * b
```

```python
import re, struct
TRANS = ("v_exp_f32","v_log_f32","v_rcp_f32","v_rsq_f32","v_sqrt_f32","v_sin_f32","v_cos_f32")
def f2u(x): return struct.unpack("<I", struct.pack("<f", x))[0]
def fh(x): return "0x%08x" % f2u(x)

def regs_of(tok):
    tok = tok.strip()
    tok = tok.lstrip("-")
    if tok.startswith("abs(") or tok.startswith("|"): tok = tok.strip("|").replace("abs(","").rstrip(")")
    m = re.fullmatch(r"([vs])(\d+)", tok)
    if m: return [(m.group(1), int(m.group(2)))]
    m = re.fullmatch(r"([vs])\[(\d+):(\d+)\]", tok)
    if m: return [(m.group(1), i) for i in range(int(m.group(2)), int(m.group(3))+1)]
    if tok == "vcc": return [("s",106),("s",107)]
    if tok == "vcc_lo": return [("s",106)]
    if tok == "vcc_hi": return [("s",107)]
    if tok == "m0": return [("m",0)]
    if tok == "exec": return [("e",0)]
    return []

class Asm:
    def __init__(self):
        self.lines = []
    def i(self, s):
        for l in s.strip("\n").split("\n"):
            l = l.strip()
            if l: self.lines.append(l)
    def label(self, name): self.lines.append(name + ":")
    def c(self, s): self.lines.append("; " + s)
    def raw(self, s): self.lines.append("\x00" + s)
    def flush(self): self.lines.append("\x01flush")

    def render(self):
        out = []
        t = 0
        vw = {}
        mw = {}
        mc = {}
        sw = {}
        m0w = [-100]
        nnop = 0
        def need(req):
            nonlocal t, nnop
            n = req - t
            if n > 0:
                nnop += n
                while n > 0:
                    k = min(n, 16)
                    out.append(f"    s_nop {k-1}")
                    t += k; n -= k
        for l in self.lines:
            if l.startswith("\x00"): out.append(l[1:]); continue
            if l == "\x01flush":
                req = t
                for r,(tt,k) in vw.items(): req = max(req, tt + 1 + (5 if r[0]=="s" else 3))
                for r,(tt,p,d) in mw.items(): req = max(req, tt + 1 + {4:8,8:12}[p])
                for r,tt in sw.items(): req = max(req, tt+1+2)
                need(req); continue
            if l.startswith(";"): out.append("    " + l); continue
            if l.endswith(":") or l.startswith("."): out.append(l); continue
            code = l.split(";")[0].strip()
            parts = code.split(None, 1)
            op = parts[0]
            rest = parts[1] if len(parts) > 1 else ""
            toks = []; depth = 0; cur = ""
            for ch in rest:
                if ch == "[": depth += 1
                if ch == "]": depth -= 1
                if ch == "," and depth == 0: toks.append(cur); cur = ""
                else: cur += ch
            toks.append(cur)
            last = toks[-1].strip().split(None, 1)
            mods = last[1] if len(last) > 1 else ""
            toks[-1] = last[0] if last else ""
            R = [regs_of(x) for x in toks]
            base = op.replace("_e32","").replace("_e64","").replace("_dpp","").replace("_sdwa","")
            req = t
            def chk(cond_t, n):
                nonlocal req
                req = max(req, cond_t + 1 + n)
            if op == "s_nop":
                out.append("    " + l); t += int(toks[0], 0) + 1; continue
            isdpp = "_dpp" in op or "row_" in mods or "quad_perm" in mods or "wave_" in mods
            if op.startswith("v_mfma"):
                p = 8 if "32x32x16" in op else 4
                D, A_, B_, C_ = R[0], R[1], R[2], R[3]
                for r in A_ + B_ + C_:
                    if r in vw: chk(vw[r][0], 3 if vw[r][1]=="d" else 2)
                for r in A_ + B_:
                    if r in mw: chk(mw[r][0], {4:8,8:12}[mw[r][1]])
                for r in C_:
                    if r in mw and not (mw[r][2] == tuple(C_) and mw[r][1] == p): chk(mw[r][0], {4:6,8:10}[mw[r][1]])
                for r in D:
                    if r in mw and r not in C_: chk(mw[r][0], {4:8,8:12}[mw[r][1]])
                    if r in sw: chk(sw[r], 2)
                need(req)
                for r in D: mw[r] = (t, p, tuple(D)); vw.pop(r, None)
                for r in C_: mc[r] = (t, p)
            elif op.startswith("v_"):
                nd = 1
                if base in ("v_add_co_u32","v_addc_co_u32","v_sub_co_u32","v_subb_co_u32"): nd = 2
                if "_swap" in base: nd = 2
                dst = sum(R[:nd], [])
                src = sum(R[nd:], [])
                if base in ("v_fmac_f32","v_dot2c_f32_bf16","v_writelane_b32") or "_swap" in base or isdpp: src = src + dst
                if base == "v_cndmask_b32" and len(toks) == 3: src += regs_of("vcc")
                kind = "t" if base in TRANS else ("d" if base.startswith("v_dot") else ("p" if base.startswith("v_pk_") else "v"))
                for r in src:
                    if r in vw:
                        tt, k = vw[r]
                        if r[0] == "s": chk(tt, 4 if base in ("v_readlane_b32","v_writelane_b32") else 2)
                        else:
                            if k == "t" and kind != "t": chk(tt, 1)
                            if k == "d" and not (kind == "d" and r in (R[3] if len(R) > 3 else dst) and r not in R[1]+R[2]): chk(tt, 3)
                            if isdpp or "permlane" in base: chk(tt, 2)
                            if base in ("v_readfirstlane_b32","v_readlane_b32"): chk(tt, 1)
                if base.startswith("v_pk_"):
                    ms = re.search(r"op_sel:\[([0-9,]+)\]", mods); mh = re.search(r"op_sel_hi:\[([0-9,]+)\]", mods)
                    for k, rr in enumerate(R[1:]):
                        if len(rr) != 2: continue
                        if ms and ms.group(1).split(",")[k] == "1" and rr[1] in vw: chk(vw[rr[1]][0], 2)
                        if mh and mh.group(1).split(",")[k] == "0" and rr[0] in vw: chk(vw[rr[0]][0], 2)
                for r in src + dst:
                    if r in mw: chk(mw[r][0], {4:8,8:12}[mw[r][1]])
                for r in dst:
                    if r in mc: chk(mc[r][0], {4:3,8:7}[mc[r][1]])
                    if r in sw: chk(sw[r], 2)
                    if r in vw and vw[r][1] == "d" and kind != "d": chk(vw[r][0], 3)
                need(req)
                for r in dst: vw[r] = (t, kind); mw.pop(r, None)
            elif op.startswith("ds_") or op.startswith("buffer_") or op.startswith("global_"):
                isload = ("_read" in op or "_load" in op or "bpermute" in op) and " lds" not in (" " + mods)
                dst = R[0] if isload else []
                src = sum(R[1:] if isload else R, [])
                for r in src:
                    if r in vw:
                        tt, k = vw[r]
                        if r[0] == "s": chk(tt, 5)
                        elif k == "t": chk(tt, 1)
                        elif k == "d": chk(tt, 3)
                        elif k == "p": chk(tt, 2)
                for r in src + dst:
                    if r in mw: chk(mw[r][0], {4:8,8:12}[mw[r][1]])
                for r in dst:
                    if r in sw: chk(sw[r], 1)
                    if r in mc: chk(mc[r][0], {4:3,8:7}[mc[r][1]])
                if "addtid" in op or " lds" in (" " + mods): chk(m0w[0], 1)
                need(req)
                for r in dst: vw.pop(r, None); mw.pop(r, None)
                if "_store_dwordx4" in op or "_store_dwordx3" in op:
                    d = R[0] if op.startswith("buffer") else R[1]
                    for r in d: sw[r] = t
            else:
                if R and R[0] == [("m",0)] and not op.startswith("s_cmp"): m0w[0] = t
                if not op.startswith("s_cmp") and not op.startswith("s_cbranch") and R:
                    for r in R[0]: vw.pop(r, None)
            out.append("    " + l); t += 1
        self.nnop = nnop
        return "\n".join(out) + "\n"
```

```python
import sys, math
sys.path.insert(0, "gen")
from asmlib import *

NAME = "gated_mix__spectral_gfnet__ssm_conv_s4__prompt_kernel"
XO, YO, ZO, BO, EPO, STAMP = 0, 4<<20, 8<<20, 12<<20, 16<<20, 17<<20
LDS = 81920
SGN2 = "0x80008000"
XS, XSTR = 0, 1056
YT = 8448
WT = YT + 8320
VT = WT + 8320
TT = VT + 8704
TSTR = 2048 + 16
GP = TT + 8*TSTR
RG = 8704
KCO = 4352
OTO = 6144
UA = 8*RG
USTR = (256+2048+16)*2 + 32
U0 = 512
K2A = UA + 2*USTR
K3A = K2A + 1024
assert K3A + 640 <= LDS

def v(a, n=1): return f"v{a}" if n == 1 else f"v[{a}:{a+n-1}]"

class Gen:
    def __init__(self, dbg=False, opt=None):
        self.a = Asm(); self.dbg = dbg; self.opt = opt or {}
        self.nst = 0
    def i(self, s): self.a.i(s)
    def stamp(self, slot):
        if self.dbg: self.i(f"s_memrealtime s[{64+2*slot}:{65+2*slot}]")
    def dump_stamps(self, n):
        if not self.dbg: return
        self.nst += 1
        self.i("s_waitcnt vmcnt(0) lgkmcnt(0)")
        self.stamp(n-1)
        self.i("s_waitcnt lgkmcnt(0)")
        self.i("v_mov_b32 v1, 0")
        for k in range(n): self.i(f"v_writelane_b32 v1, s{64+2*k}, {k}")
        self.i("v_writelane_b32 v1, s62, 15")
        self.i(f"""v_and_b32 v2, 63, v0
            v_lshlrev_b32 v2, 2, v2
            s_lshl_b32 s38, s2, 3
            s_add_u32 s38, s38, s34
            s_lshl_b32 s38, s38, 6
            s_add_u32 s38, s38, {STAMP}
            s_mov_b64 exec, 0xffff
            buffer_store_dword v1, v2, s[28:31], s38 offen
            s_mov_b64 exec, -1""")
    def srd(self, s, karg, size):
        self.i(f"s_load_dwordx2 s[{s}:{s+1}], s[0:1], {karg}")
        self.i(f"s_mov_b32 s{s+2}, {size}")
        self.i(f"s_mov_b32 s{s+3}, 0x20000")
    def cs(self, c, s, ang):
        self.i(f"v_cos_f32 v{c}, v{ang}"); self.i(f"v_sin_f32 v{s}, v{ang}")
    def lin(self, d, base, step, k):
        if k == 0: self.i(f"v_mov_b32 v{d}, v{base}")
        elif k == 1: self.i(f"v_add_f32 v{d}, v{base}, v{step}")
        else: self.i(f"v_fmamk_f32 v{d}, v{step}, {fh(float(k))}, v{base}")
    def cmul_pk(self, dr, di, tc, ts, t, conj=False, n=4):
        for h in range(0, n, 2):
            self.i(f"v_pk_mul_f32 {v(t+2*h,2)}, {v(dr+h,2)}, {v(tc+h,2)}")
            self.i(f"v_pk_mul_f32 {v(t+2*h+2,2)}, {v(dr+h,2)}, {v(ts+h,2)}")
        for h in range(0, n, 2):
            n1 = "" if conj else " neg_lo:[1,0,0] neg_hi:[1,0,0]"
            n2 = " neg_lo:[0,0,1] neg_hi:[0,0,1]" if conj else ""
            self.i(f"v_pk_fma_f32 {v(dr+h,2)}, {v(di+h,2)}, {v(ts+h,2)}, {v(t+2*h,2)}{n1}")
            self.i(f"v_pk_fma_f32 {v(di+h,2)}, {v(di+h,2)}, {v(tc+h,2)}, {v(t+2*h+2,2)}{n2}")
    def mf(self, d, a, b, first):
        self.i(f"v_mfma_f32_16x16x32_bf16 {v(d,4)}, {v(a,4)}, {v(b,4)}, {'0' if first else v(d,4)}")
    def issue_gather(self, quads, vaddr, soffs):
        for q, so in zip(quads, soffs):
            self.i(f"buffer_load_dwordx4 {v(q,4)}, v{vaddr}, s[28:31], s{so} offen sc1")
    def check_gather(self, lab, quads, vaddr, soffs, acc):
        a = self.a
        a.label(lab)
        self.i("s_waitcnt vmcnt(0)")
        first = True
        for q in quads:
            if first: self.i(f"v_xor_b32 v{acc}, s32, v{q+1}")
            else: self.i(f"v_bitop3_b32 v{acc}, v{q+1}, s32, v{acc} bitop3:0xbe")
            first = False
            self.i(f"v_bitop3_b32 v{acc}, v{q+3}, s33, v{acc} bitop3:0xbe")
        self.i(f"v_cmp_ne_u32 vcc, 0, v{acc}")
        self.i(f"s_cmp_eq_u64 vcc, 0")
        self.i(f"s_cbranch_scc1 {lab}_ok")
        self.i("s_mov_b64 exec, vcc")
        self.i(f"s_sleep {self.opt.get('sleep', 2)}")
        self.bound(lab)
        self.issue_gather(quads, vaddr, soffs)
        self.i(f"s_branch {lab}")
        a.label(lab + "_ok")
        self.i("s_mov_b64 exec, -1")

    def bound(self, lab):
        self.i("s_add_u32 s62, s62, 1")
        self.i(f"s_cmp_gt_u32 s62, {self.opt.get('bound', 2000)}")
        self.i(f"s_cbranch_scc1 {lab}_ok")
    def prologue(self):
        a = self.a; i = self.i
        if self.dbg:
            for k in range(1, 10): i(f"s_mov_b32 s{64+2*k}, 0")
        self.stamp(0)
        i("s_cmp_ge_u32 s2, 480")
        i("s_cbranch_scc1 L_end")
        i("s_load_dwordx2 s[28:29], s[0:1], 120")
        i("s_getpc_b64 s[40:41]")
        a.label("L_pc")
        i("v_lshlrev_b32 v4, 7, v0")
        i("v_min_u32 v4, L_code_end-L_pc-4, v4")
        i("v_mov_b32 v5, s41")
        i("v_add_co_u32 v4, vcc, s40, v4")
        i("v_addc_co_u32 v5, vcc, 0, v5, vcc")
        i("global_load_dword v6, v[4:5], off")
        i("s_mov_b32 s30, 0x10000000")
        i("s_mov_b32 s31, 0x20000")
        i("v_readfirstlane_b32 s34, v0")
        i("v_and_b32 v1, 63, v0")
        i("v_and_b32 v2, 15, v0")
        i("v_bfe_u32 v3, v0, 4, 2")
        i("s_lshr_b32 s34, s34, 6")
        i("s_mov_b32 s62, 0")
        i("s_cmp_ge_u32 s2, 256")
        i("s_cbranch_scc1 L_B")
    def tags(self):
        self.i("s_mul_i32 s32, s32, 0x9e3779b1")
        self.i("s_add_u32 s32, s32, 0x7f4a7c15")
        self.i("s_xor_b32 s33, s32, 0x5bd1e995")

    def partA(self):
        a = self.a; i = self.i
        self.srd(4, 0, 1835008)
        self.srd(8, 8, 921600)
        self.srd(12, 16, 921600)
        self.srd(16, 88, 896)
        self.srd(20, 96, 896)
        self.srd(24, 104, 1835008)
        i("""s_and_b32 s39, s2, 7
            s_lshr_b32 s42, s2, 3
            s_lshl_b32 s35, s39, 5
            s_add_u32 s35, s35, s42
            s_bfe_u32 s36, s35, 0x40002
            s_and_b32 s38, s35, 0xc0
            s_add_u32 s36, s36, s38
            s_and_b32 s38, s35, 3
            s_lshl_b32 s38, s38, 4
            s_add_u32 s36, s36, s38""")
        i(f"""s_lshl_b32 s38, s34, 8
            s_add_u32 s38, s38, s36
            s_mul_i32 s38, s38, 896
            s_mul_i32 s43, s34, {XSTR}
            s_add_u32 m0, s43, {XS}
            v_lshlrev_b32 v4, 4, v1
            s_mul_i32 s44, s36, 896""")
        i("""s_bfe_u32 s45, s42, 0x10002
            s_sub_u32 s37, 8, s39
            s_and_b32 s37, s37, 7
            s_cmp_eq_u32 s45, 0
            s_cselect_b32 s37, s39, s37""")
        i("s_cmp_ge_u32 s34, 4")
        i("s_cbranch_scc1 L_Aaux")
        i("s_waitcnt lgkmcnt(0)")
        i("buffer_load_dwordx4 v4, s[4:7], s38 offen lds")
        i(f"s_mov_b32 s46, {EPO}")
        i("s_load_dword s32, s[28:29], s46")
        self.p1_consts()
        i("s_waitcnt lgkmcnt(0)")
        self.tags()
        i(f"s_lshl_b32 s46, s35, 14")
        i(f"s_add_u32 s46, s46, {YO}")
        i("s_waitcnt vmcnt(0)")
        self.stamp(1)
        i("s_barrier")
        self.p1_compute()
        self.stamp(2)
        self.p2_consts()
        self.p3_consts_a()
        a.flush()
        i("s_branch L_Acommon")
        a.label("L_Aaux")
        self.aux_first()
        a.flush()
        a.label("L_Acommon")
        self.p2()
        i("s_cmp_ge_u32 s34, 4")
        i("s_cbranch_scc1 L_Aaux2")
        self.p3_consts_b()
        self.zgather("Lzg_m")
        self.p3_compute()
        self.dump_stamps(10)
        i("s_endpgm")
        a.label("L_Aaux2")
        self.aux_mid()
        self.zgather("Lzg_a")
        self.aux_last()
        self.dump_stamps(10)
        i("s_endpgm")

    def p1_consts(self):
        i = self.i
        ER, EI, TC, TS, FRE, FIM = 16, 32, 48, 56, 64, 80
        t = 96
        i(f"""v_lshrrev_b32 v96, 3, v2
            v_sub_u32 v101, 0, v96
            v_and_b32 v101, {SGN2}, v101
            s_lshl_b32 s47, s34, 1
            v_add_u32 v96, s47, v96
            v_cvt_f32_u32 v96, v96
            v_bfe_u32 v97, v2, 2, 1
            v_mul_u32_u24 v97, 7, v97
            v_and_b32 v103, 3, v2
            v_add_u32 v97, v97, v103
            v_cvt_f32_u32 v97, v97
            v_mul_f32 v98, {fh(-1/8)}, v96
            v_mul_f32 v99, {fh(-1/14)}, v97
            v_and_b32 v102, 1, v3
            v_lshrrev_b32 v103, 1, v3
            v_lshl_add_u32 v103, v102, 1, v103
            v_add_u32 v102, -1, v102
            v_lshlrev_b32 v5, 6, v103
            v_cvt_f32_u32 v103, v103
            v_mul_f32 v100, v103, v99""")
        i(f"""v_lshrrev_b32 v103, 2, v2
            v_mul_u32_u24 v103, {XSTR}, v103
            v_add_u32 v5, v5, v103
            v_and_b32 v103, 3, v2
            v_lshl_add_u32 v5, v103, 3, v5
            s_lshl_b32 s47, s34, 12
            v_add_u32 v7, s47, v4""")
        for st in range(4):
            self.lin(104, 100, 99, 4*st)
            for j in range(1, 4): self.lin(104+j, 104, 98, j)
            for j in range(4): self.cs(108+j, 112+j, 104+j)
            for h in range(2):
                i(f"v_cvt_pk_bf16_f32 v{ER+4*st+h}, v{108+2*h}, v{109+2*h}")
                i(f"v_cvt_pk_bf16_f32 v{EI+4*st+h}, v{112+2*h}, v{113+2*h}")
            if st == 3:
                for h in range(2):
                    i(f"v_and_b32 v{ER+4*st+h}, v102, v{ER+4*st+h}")
                    i(f"v_and_b32 v{EI+4*st+h}, v102, v{EI+4*st+h}")
            for h in range(2):
                i(f"v_xor_b32 v{ER+4*st+2+h}, v101, v{ER+4*st+h}")
                i(f"v_xor_b32 v{EI+4*st+2+h}, v101, v{EI+4*st+h}")
        i(f"""v_cvt_f32_u32 v103, s36
            v_mul_f32 v103, {fh(-1/2048)}, v103
            v_mul_f32 v100, v103, v96
            v_mul_f32 v99, {fh(-1/448)}, v97
            v_lshlrev_b32 v103, 2, v3
            v_cvt_f32_u32 v103, v103
            v_fmac_f32 v100, v103, v99""")
        for mt in range(2):
            for r in range(4): self.lin(104+r, 100, 99, 16*mt+r)
            for r in range(4): self.cs(TC+4*mt+r, TS+4*mt+r, 104+r)
        i(f"""v_cvt_f32_u32 v99, v2
            v_mul_f32 v99, {fh(-1/32)}, v99
            v_mul_f32 v100, v103, v99
            v_and_b32 v101, 1, v2
            v_sub_u32 v101, 0, v101
            v_and_b32 v101, {SGN2}, v101
            v_xor_b32 v102, {SGN2}, v101""")
        for r in range(4): self.lin(104+r, 100, 99, r)
        for r in range(4): self.cs(108+r, 112+r, 104+r)
        for r in range(4):
            i(f"v_cvt_pk_bf16_f32 v{FRE+r}, v{108+r}, -v{112+r}")
            i(f"v_cvt_pk_bf16_f32 v{FIM+r}, v{112+r}, v{108+r}")
        for F in (FRE, FIM):
            for r in range(4):
                if r & 1: i(f"v_xor_b32 v{F+4+r}, {SGN2}, v{F+r}")
                else: i(f"v_mov_b32 v{F+4+r}, v{F+r}")
                i(f"v_xor_b32 v{F+8+r}, v101, v{F+r}")
                i(f"v_xor_b32 v{F+12+r}, v{102 if r & 1 else 101}, v{F+r}")

    def p1_compute(self):
        i = self.i
        ER, EI, TC, TS, FRE, FIM = 16, 32, 48, 56, 64, 80
        A = 96
        for mt in range(2):
            for st in range(4):
                for h in range(2):
                    i(f"ds_read_b64_tr_b16 {v(A+16*mt+4*st+2*h,2)}, v5 offset:{XS + h*4*XSTR + st*256 + mt*32}")
        D = [8, 96]
        for mt in range(2):
            for st in range(4):
                n = 16 - (8*mt + 2*st + 2)
                i(f"s_waitcnt lgkmcnt({min(n,15)})")
                self.mf(D[mt], A+16*mt+4*st, ER+4*st, st == 0)
                self.mf(D[mt]+4, A+16*mt+4*st, EI+4*st, st == 0)
        self.cmul_pk(8, 12, TC, TS, 104)
        for r in range(4): i(f"v_cvt_pk_bf16_f32 v{112+r}, v{8+r}, v{12+r}")
        Y = 16
        for t in range(2):
            self.mf(Y+8*t, 112, FRE+4*t, True)
            self.mf(Y+8*t+4, 112, FIM+4*t, True)
        self.cmul_pk(96, 100, TC+4, TS+4, 104)
        for r in range(4): i(f"v_cvt_pk_bf16_f32 v{116+r}, v{96+r}, v{100+r}")
        for t in range(2):
            self.mf(Y+8*t, 116, FRE+8+4*t, False)
            self.mf(Y+8*t+4, 116, FIM+8+4*t, False)
        P = 32
        for k in range(4):
            i(f"v_mov_b32 v{P+4*k+1}, s32"); i(f"v_mov_b32 v{P+4*k+3}, s33")
        for t in range(2):
            for p in range(2):
                q = P + 4*(2*t+p)
                i(f"v_cvt_pk_bf16_f32 v{q}, v{Y+8*t+2*p}, v{Y+8*t+4+2*p}")
                i(f"v_cvt_pk_bf16_f32 v{q+2}, v{Y+8*t+2*p+1}, v{Y+8*t+4+2*p+1}")
                i(f"buffer_store_dwordx4 {v(q,4)}, v7, s[28:31], s46 offen offset:{1024*(2*t+p)} sc1")

    def p2_consts(self):
        i = self.i
        i(f"""v_cvt_f32_u32 v48, v2
            v_lshlrev_b32 v49, 2, v3
            v_cvt_f32_u32 v49, v49
            v_mul_f32 v48, {fh(-1/256)}, v48
            v_mul_f32 v49, v49, v48""")
        for r in range(4): self.lin(52+r, 49, 48, r)
        for r in range(4): self.cs(24+r, 28+r, 52+r)
        for r in range(4): i(f"v_mul_f32 v{52+r}, 0x41800000, v{52+r}")
        for r in range(4): self.cs(56+r, 60+r, 52+r)
        for r in range(4):
            i(f"v_cvt_pk_bf16_f32 v{16+r}, v{56+r}, -v{60+r}")
            i(f"v_cvt_pk_bf16_f32 v{20+r}, v{60+r}, v{56+r}")

    def p3_consts_a(self):
        i = self.i
        i(f"""v_and_b32 v48, 7, v2
            v_mul_u32_u24 v49, v48, v3
            v_cvt_f32_u32 v49, v49
            v_mul_f32 v49, {fh(1/8)}, v49
            v_and_b32 v48, 1, v2
            v_sub_u32 v48, 0, v48
            v_and_b32 v48, {SGN2}, v48
            v_lshrrev_b32 v50, 3, v2
            v_cvt_f32_u32 v50, v50
            v_mul_f32 v50, {fh(1/7)}, v50""")
        self.cs(56, 60, 49)
        i("v_cvt_pk_bf16_f32 v64, v56, -v60")
        for nt in range(4):
            if nt:
                i(f"v_add_f32 v50, {fh(2/7)}, v50")
                i(f"v_mov_b32 v{64+8*nt}, v64")
            for r in range(1, 4): self.lin(52+r, 49, 50, r)
            for r in range(1, 4): self.cs(56+r, 60+r, 52+r)
            for r in range(1, 4): i(f"v_cvt_pk_bf16_f32 v{64+8*nt+r}, v{56+r}, -v{60+r}")
            for r in range(4): i(f"v_xor_b32 v{64+8*nt+4+r}, v48, v{64+8*nt+r}")
        i(f"""v_cvt_f32_u32 v48, s36
            v_mul_f32 v48, {fh(1/2048)}, v48
            v_cvt_f32_u32 v49, v3
            v_mul_f32 v49, v49, v48
            s_lshl_b32 s47, s34, 4
            v_add_u32 v50, s47, v2
            v_cvt_f32_u32 v50, v50
            v_mul_f32 v50, {fh(1/448)}, v50""")
        for mt in range(2):
            if mt: i("v_fmac_f32 v49, 4.0, v48")
            for r in range(4): self.lin(52+r, 49, 50, r)
            for r in range(4): self.cs(96+4*mt+r, 104+4*mt+r, 52+r)

    def p3_consts_b(self):
        i = self.i
        i(f"""s_lshl_b32 s47, s34, 4
            v_add_u32 v50, s47, v2
            v_cvt_f32_u32 v50, v50
            v_mul_f32 v50, {fh(1/64)}, v50
            v_lshlrev_b32 v49, 3, v3
            v_cvt_f32_u32 v49, v49
            v_mul_f32 v49, v49, v50
            v_and_b32 v48, 1, v2
            v_sub_u32 v48, 0, v48
            v_and_b32 v48, {SGN2}, v48""")
        for g in range(2):
            st = 2*g
            for r in range(4): self.lin(52+r, 49, 50, 2*r+g)
            for r in range(4): self.cs(56+r, 60+r, 52+r)
            for r in range(4):
                i(f"v_cvt_pk_bf16_f32 v{16+4*st+r}, v{56+r}, -v{60+r}")
                i(f"v_cvt_pk_bf16_f32 v{32+4*st+r}, v{60+r}, v{56+r}")
            for r in range(4):
                i(f"v_xor_b32 v{16+4*st+4+r}, v48, v{16+4*st+r}")
                i(f"v_xor_b32 v{32+4*st+4+r}, v48, v{32+4*st+r}")
        i(f"""v_and_b32 v48, 7, v2
            v_lshlrev_b32 v49, 2, v48
            ds_read_b32 v52, v49 offset:{GP}
            ds_read_b32 v53, v49 offset:{GP+32}
            ds_read_b32 v54, v49 offset:{GP+64}
            ds_read_b32 v55, v49 offset:{GP+96}
            v_mul_u32_u24 v4, 272, v2
            v_lshl_add_u32 v4, v3, 4, v4
            v_lshrrev_b32 v50, 3, v2
            v_lshlrev_b32 v51, 6, v50
            v_lshl_add_u32 v51, v3, 2, v51
            v_add_u32 v51, s47, v51
            v_mul_u32_u24 v5, {TSTR}, v48
            v_lshl_add_u32 v5, v51, 2, v5
            v_mul_u32_u24 v7, {256*896}, v48
            v_lshl_add_u32 v7, v51, 1, v7
            v_lshl_add_u32 v1, v50, 30, v7
            s_waitcnt lgkmcnt(0)""")
        self.sigmoid(6, 52, None)
    def sigmoid(self, g, p, omg):
        i = self.i
        i(f"""v_add_f32 v{p}, v{p}, v{p+1}
            v_add_f32 v{p+2}, v{p+2}, v{p+3}
            v_add_f32 v{p}, v{p}, v{p+2}
            v_cvt_pk_bf16_f32 v{p}, v{p}, v{p}
            v_lshlrev_b32 v{p}, 16, v{p}
            v_mul_f32 v{p}, {fh(-math.log2(math.e))}, v{p}
            v_exp_f32 v{p}, v{p}
            v_add_f32 v{p}, 1.0, v{p}
            v_rcp_f32 v{p}, v{p}
            v_cvt_pk_bf16_f32 v{p}, v{p}, v{p}
            v_lshlrev_b32 v{g}, 16, v{p}""")
        if omg is not None:
            i(f"""v_sub_f32 v{p}, 1.0, v{g}
                v_cvt_pk_bf16_f32 v{p}, v{p}, v{p}
                v_lshlrev_b32 v{omg}, 16, v{p}""")

    def aux_first(self):
        i = self.i
        i(f"""v_and_b32 v8, 255, v0
            v_and_b32 v9, 3, v0
            v_lshrrev_b32 v10, 2, v8
            v_lshlrev_b32 v11, 2, v10
            v_mul_u32_u24 v12, {2*256*896}, v9
            v_add_u32 v12, v12, v11
            s_add_u32 s47, s44, {256*896}""")
        i(f"""v_lshrrev_b32 v13, 2, v10
            v_and_b32 v14, 3, v10
            v_lshl_add_u32 v13, v14, 4, v13
            v_lshlrev_b32 v13, 3, v13
            v_add_u32 v13, s37, v13
            s_bfe_u32 s48, s42, 0x10003
            s_mul_i32 s48, s48, 7
            s_lshr_b32 s49, s42, 4
            s_lshl_b32 s49, s49, 1
            s_add_u32 s48, s48, s49
            s_and_b32 s49, s42, 7
            s_mul_i32 s49, s49, 56
            s_add_u32 s48, s48, s49
            s_sub_u32 s49, 447, s48
            s_cmp_eq_u32 s45, 0
            s_cselect_b32 s48, s48, s49
            s_cselect_b32 s49, 28, -28
            s_cselect_b32 s50, 1, -1
            s_mov_b32 s55, 0x05040100
            s_mov_b32 s56, 0x07060302
            s_cselect_b32 s51, s55, s56
            s_cselect_b32 s52, s56, s55
            s_cselect_b32 s53, 0, 0x80000000
            s_lshl_b32 s48, s48, 1
            v_mul_lo_u32 v14, v9, s49
            v_add_u32 v14, s48, v14
            s_movk_i32 s54, 450""")
        for rnd in range(4):
            i(f"""v_add_u32 v15, {512*rnd}, v13
                v_mul_lo_u32 v15, v15, s50
                v_and_b32 v15, 2047, v15
                v_mad_u32_u24 v{40+rnd}, v15, s54, v14""")
        i("s_waitcnt lgkmcnt(0)")
        i("buffer_load_dwordx4 v4, s[4:7], s38 offen lds")
        for rnd in range(4):
            i(f"buffer_load_dword v{64+4*rnd}, v12, s[4:7], s44 offen offset:{256*rnd}")
            i(f"buffer_load_dword v{66+4*rnd}, v12, s[4:7], s47 offen offset:{256*rnd}")
        i(f"s_mov_b32 s46, {EPO}")
        i("s_load_dword s32, s[28:29], s46")
        for rnd in range(4):
            i(f"buffer_load_dword v{80+rnd}, v11, s[20:23], 0 offen offset:{256*rnd}")
        for rnd in range(4):
            i(f"buffer_load_dword v{84+rnd}, v11, s[16:19], 0 offen offset:{256*rnd}")
        self.p2_consts()
        i("s_waitcnt lgkmcnt(0)")
        self.tags()
        for rnd in range(4):
            i(f"v_mov_b32 v{65+4*rnd}, s32"); i(f"v_mov_b32 v{67+4*rnd}, s33")
        i(f"""s_lshl_b32 s46, s36, 14
            s_add_u32 s46, s46, {XO}
            s_add_u32 s47, s46, 4096
            s_add_u32 s48, s46, 8192
            s_add_u32 s49, s46, 12288
            v_lshlrev_b32 v15, 4, v8""")
        i("s_waitcnt vmcnt(8)")
        self.stamp(1)
        for rnd in range(4):
            i(f"buffer_store_dwordx4 {v(64+4*rnd,4)}, v15, s[28:31], s{46+rnd} offen sc1")
        i("s_barrier")
        wf = self.opt.get("wflag", "")
        i("s_waitcnt vmcnt(4)")
        for rnd in range(4):
            if self.opt.get("now"): break
            i(f"buffer_load_dword v{88+rnd}, v{40+rnd}, s[8:11], 0 offen {wf}")
            i(f"buffer_load_dword v{92+rnd}, v{40+rnd}, s[12:15], 0 offen {wf}")
        for rnd in range(4):
            for e in range(2):
                i(f"v_dot2_f32_bf16 v{44+e}, v{64+4*rnd+2*e}, v{80+rnd}, {'0' if rnd == 0 else 'v%d' % (44+e)}")
        for sh in (4, 8):
            for e in range(2): i(f"v_add_f32_dpp v{44+e}, v{44+e}, v{44+e} row_ror:{sh} row_mask:0xf bank_mask:0xf")
        for e in range(2):
            i(f"v_mov_b32 v{46+e}, v{44+e}")
        for e in range(2): i(f"v_permlane16_swap_b32 v{44+e}, v{46+e}")
        for e in range(2): i(f"v_add_f32 v{44+e}, v{44+e}, v{46+e}")
        for e in range(2): i(f"v_mov_b32 v{46+e}, v{44+e}")
        for e in range(2): i(f"v_permlane32_swap_b32 v{44+e}, v{46+e}")
        for e in range(2): i(f"v_add_f32 v{44+e}, v{44+e}, v{46+e}")
        i(f"""s_lshl_b32 s47, s34, 5
            v_lshlrev_b32 v46, 3, v9
            v_add_u32 v46, s47, v46
            ds_write_b64 v46, v[44:45] offset:{GP-128}""")
        i(f"""v_mul_u32_u24 v46, 2080, v9
            v_add_u32 v46, v46, v11
            v_add_u32 v46, {WT}, v46
            s_waitcnt vmcnt(0)""")
        for rnd in range(4):
            i(f"""v_perm_b32 v{48+2*rnd}, v{92+rnd}, v{88+rnd}, s51
                v_perm_b32 v{49+2*rnd}, v{92+rnd}, v{88+rnd}, s52
                v_xor_b32 v{48+2*rnd}, s53, v{48+2*rnd}
                v_xor_b32 v{49+2*rnd}, s53, v{49+2*rnd}
                ds_write2st64_b32 v46, v{48+2*rnd}, v{49+2*rnd} offset0:{rnd} offset1:{rnd+4}""")
        self.stamp(2)

    def p2(self):
        i = self.i
        Q = [112, 116]
        i(f"""v_lshrrev_b32 v11, 2, v0
            v_and_b32 v12, 3, v0
            v_lshlrev_b32 v8, 14, v11
            v_lshl_add_u32 v8, v12, 4, v8
            v_mul_u32_u24 v9, 2080, v12
            v_lshl_add_u32 v9, v11, 2, v9
            v_add_u32 v9, {YT}, v9
            s_lshr_b32 s47, s34, 1
            s_mul_i32 s47, s47, 2080
            s_and_b32 s48, s34, 1
            s_lshl_b32 s48, s48, 10
            s_add_u32 s47, s47, s48
            v_and_b32 v10, 63, v0
            v_lshlrev_b32 v10, 4, v10
            v_add_u32 v10, s47, v10""")
        i(f"""s_lshr_b32 s46, s37, 1
            s_lshl_b32 s46, s46, 2
            s_lshl_b32 s47, s45, 1
            s_add_u32 s46, s46, s47
            s_lshr_b32 s47, s42, 4
            s_add_u32 s46, s46, s47
            s_lshl_b32 s46, s46, 4
            s_and_b32 s48, s37, 1
            s_lshl_b32 s48, s48, 3
            s_add_u32 s46, s46, s48
            s_bfe_u32 s48, s42, 0x10003
            s_lshl_b32 s48, s48, 2
            s_add_u32 s46, s46, s48
            s_and_b32 s48, s42, 3
            s_add_u32 s46, s46, s48
            s_lshl_b32 s46, s46, 6
            s_add_u32 s46, s46, {YO}
            s_and_b32 s48, s34, 1
            s_or_b32 s48, s48, s47
            s_cmp_eq_u32 s48, 0
            s_mov_b32 s51, {fh(1/(2048*448))}
            s_cselect_b32 s50, s51, {fh(2/(2048*448))}
            s_mov_b32 s51, s50
            s_add_u32 s47, s46, {128*16384}
            s_lshl_b32 s48, s37, 5
            s_add_u32 s48, s48, s42
            s_lshl_b32 s48, s48, 14
            s_add_u32 s48, s48, {ZO}
            s_add_u32 s49, s48, 8192
            v_lshlrev_b32 v11, 4, v0
            s_waitcnt lgkmcnt(0)
            s_barrier""")
        self.stamp(3)
        self.issue_gather(Q, 8, [46, 47])
        i(f"ds_read_b128 v[48:51], v10 offset:{WT}")
        i("s_waitcnt lgkmcnt(0)")
        for r in range(4):
            i(f"v_lshlrev_b32 v{32+r}, 16, v{48+r}")
            i(f"v_and_b32 v{36+r}, 0xffff0000, v{48+r}")
        for r in range(0, 8, 2): i(f"v_pk_mul_f32 {v(32+r,2)}, {v(32+r,2)}, s[50:51]")
        self.check_gather("Lyg", Q, 8, [46, 47], 12)
        self.stamp(4)
        for k, q in enumerate(Q):
            i(f"ds_write2st64_b32 v9, v{q}, v{q+2} offset0:{2*k} offset1:{2*k+4}")
        i("s_waitcnt lgkmcnt(0)")
        i("s_barrier")
        i(f"ds_read_b128 v[48:51], v10 offset:{YT}")
        i("s_waitcnt lgkmcnt(0)")
        DR, DI, T = 52, 56, 40
        self.mf(DR, 48, 16, True); self.mf(DI, 48, 20, True)
        self.cmul_pk(DR, DI, 24, 28, T)
        for r in range(4): i(f"v_cvt_pk_bf16_f32 v{48+r}, v{DR+r}, v{DI+r}")
        self.mf(DR, 16, 48, True); self.mf(DI, 20, 48, True)
        self.cmul_pk(DR, DI, 32, 36, T)
        for r in range(4): i(f"v_cvt_pk_bf16_f32 v{48+r}, v{DI+r}, v{DR+r}")
        self.mf(DR, 48, 20, True); self.mf(DI, 48, 16, True)
        self.cmul_pk(DR, DI, 24, 28, T, conj=True)
        for r in range(4): i(f"v_cvt_pk_bf16_f32 v{48+r}, v{DI+r}, v{DR+r}")
        self.mf(DR, 20, 48, True); self.mf(DI, 16, 48, True)
        for r in range(4): i(f"v_cvt_pk_bf16_f32 v{48+r}, v{DR+r}, v{DI+r}")
        i(f"ds_write_b128 v10, v[48:51] offset:{YT}")
        i("s_waitcnt lgkmcnt(0)")
        i("s_barrier")
        for k, q in enumerate(Q):
            i(f"ds_read_b32 v{q}, v9 offset:{512*k}")
            i(f"ds_read_b32 v{q+2}, v9 offset:{512*k+1024}")
        for k, q in enumerate(Q):
            i(f"s_waitcnt lgkmcnt({2-2*k})")
            i(f"buffer_store_dwordx4 {v(q,4)}, v11, s[28:31], s{48+k} offen sc1")
        self.stamp(5)
        i(f"""s_lshl_b32 s57, s35, 6
            s_add_u32 s57, s57, {ZO}
            s_add_u32 s58, s57, {128*16384}
            s_mul_i32 s48, s34, 544
            s_add_u32 s48, s48, {VT}
            v_and_b32 v9, 63, v0
            v_lshlrev_b32 v9, 2, v9
            v_add_u32 v9, s48, v9
            v_add_u32 v10, {8*544}, v9""")

    def zgather(self, lab):
        i = self.i
        Q = [112, 116]
        self.stamp(6)
        self.issue_gather(Q, 8, [57, 58])
        self.check_gather(lab, Q, 8, [57, 58], 12)
        self.stamp(7)
        i("ds_write2_b32 v9, v112, v114 offset0:0 offset1:68")
        i("ds_write2_b32 v10, v116, v118 offset0:0 offset1:68")
        i("s_waitcnt lgkmcnt(0)")
        i("s_barrier")

    def p3_compute(self):
        i = self.i
        A = [48, 112]
        for mt in range(2):
            for st in range(4):
                i(f"ds_read_b128 {v(A[mt]+4*st,4)}, v4 offset:{VT + mt*16*272 + st*64}")
        D = [8, 48]
        for mt in range(2):
            for st in range(4):
                i(f"s_waitcnt lgkmcnt({7 - (4*mt+st)})")
                self.mf(D[mt], A[mt]+4*st, 16+4*st, st == 0)
                self.mf(D[mt]+4, A[mt]+4*st, 32+4*st, st == 0)
        self.cmul_pk(8, 12, 96, 104, 56)
        for r in range(4): i(f"v_cvt_pk_bf16_f32 v{112+r}, v{8+r}, v{12+r}")
        O = 16
        for nt in range(4): self.mf(O+4*nt, 112, 64+8*nt, True)
        self.cmul_pk(48, 52, 100, 108, 56)
        for r in range(4): i(f"v_cvt_pk_bf16_f32 v{116+r}, v{48+r}, v{52+r}")
        for nt in range(4): self.mf(O+4*nt, 116, 64+8*nt+4, False)
        self.stamp(8)
        i("s_barrier")
        for nt in range(4): i(f"ds_read_b128 {v(32+4*nt,4)}, v5 offset:{TT + nt*512}")
        for nt in range(4):
            i(f"s_waitcnt lgkmcnt({3-nt})")
            for h in range(2):
                i(f"v_pk_fma_f32 {v(O+4*nt+2*h,2)}, {v(O+4*nt+2*h,2)}, v[6:7], {v(32+4*nt+2*h,2)} op_sel_hi:[1,0,1]")
            for h in range(2):
                i(f"v_cvt_pk_bf16_f32 v{48+2*nt+h}, v{O+4*nt+2*h}, v{O+4*nt+2*h+1}")
            i(f"buffer_store_dwordx2 {v(48+2*nt,2)}, v{1 if nt == 3 else 7}, s[24:27], s44 offen offset:{256*nt}")

    def aux_mid(self):
        i = self.i
        i(f"""v_and_b32 v13, 3, v0
            v_lshlrev_b32 v14, 3, v13
            ds_read_b64 v[48:49], v14 offset:{GP}
            ds_read_b64 v[50:51], v14 offset:{GP+32}
            ds_read_b64 v[52:53], v14 offset:{GP+64}
            ds_read_b64 v[54:55], v14 offset:{GP+96}
            s_waitcnt lgkmcnt(0)
            v_mov_b32 v56, v49
            v_mov_b32 v57, v51
            v_mov_b32 v58, v53
            v_mov_b32 v59, v55
            v_mov_b32 v49, v50
            v_mov_b32 v50, v52
            v_mov_b32 v51, v54""")
        self.sigmoid(60, 48, 40)
        self.sigmoid(60, 56, 41)
        for rnd in range(4):
            b = 96 + 4*rnd
            i(f"""v_lshlrev_b32 v{b}, 16, v{64+4*rnd}
                v_lshlrev_b32 v{b+1}, 16, v{66+4*rnd}
                v_and_b32 v{b+2}, 0xffff0000, v{64+4*rnd}
                v_and_b32 v{b+3}, 0xffff0000, v{66+4*rnd}
                v_lshlrev_b32 v48, 16, v{84+rnd}
                v_and_b32 v49, 0xffff0000, v{84+rnd}
                v_mul_f32 v{b}, v{b}, v48
                v_mul_f32 v{b+1}, v{b+1}, v48
                v_mul_f32 v{b+2}, v{b+2}, v49
                v_mul_f32 v{b+3}, v{b+3}, v49
                v_pk_mul_f32 {v(b,2)}, {v(b,2)}, v[40:41]
                v_pk_mul_f32 {v(b+2,2)}, {v(b+2,2)}, v[40:41]""")
        i(f"""v_and_b32 v14, 255, v0
            v_lshrrev_b32 v14, 2, v14
            v_lshlrev_b32 v42, 14, v14
            v_lshl_add_u32 v42, v13, 4, v42
            v_min_u32 v43, 31, v14
            v_lshlrev_b32 v43, 14, v43
            v_lshl_add_u32 v43, v13, 4, v43
            v_mul_u32_u24 v44, {2*TSTR}, v13
            v_lshl_add_u32 v44, v14, 3, v44
            v_add_u32 v44, {TT}, v44
            v_add_u32 v45, {TSTR}, v44
            s_bfe_u32 s50, s36, 0x20002
            s_lshl_b32 s50, s50, 4
            s_lshr_b32 s51, s36, 4
            s_add_u32 s50, s50, s51
            s_lshl_b32 s50, s50, 2
            s_and_b32 s51, s36, 3
            s_add_u32 s50, s50, s51
            s_lshl_b32 s50, s50, 6
            s_add_u32 s50, s50, {BO}
            s_add_u32 s51, s50, {64*16384}
            s_add_u32 s52, s50, {128*16384}
            s_add_u32 s53, s50, {192*16384}""")

    def aux_last(self):
        i = self.i; a = self.a
        Q = [64, 68, 72, 76]
        def issue():
            for k, q in enumerate(Q):
                i(f"buffer_load_dwordx4 {v(q,4)}, v{43 if k == 3 else 42}, s[28:31], s{50+k} offen sc1")
        issue()
        lab = "Lbg"
        a.label(lab)
        i("s_waitcnt vmcnt(0)")
        for k, q in enumerate(Q):
            if k == 0: i(f"v_xor_b32 v12, s32, v{q+1}")
            else: i(f"v_bitop3_b32 v12, v{q+1}, s32, v12 bitop3:0xbe")
            i(f"v_bitop3_b32 v12, v{q+3}, s33, v12 bitop3:0xbe")
        i(f"""v_cmp_ne_u32 vcc, 0, v12
            s_cmp_eq_u64 vcc, 0
            s_cbranch_scc1 {lab}_ok
            s_mov_b64 exec, vcc
            s_sleep {self.opt.get('sleep', 2)}""")
        self.bound(lab)
        issue()
        i(f"s_branch {lab}")
        a.label(lab + "_ok")
        i("s_mov_b64 exec, -1")
        self.stamp(8)
        for rnd, q in enumerate(Q):
            b = 96 + 4*rnd; t = 48 + 4*rnd
            i(f"""v_lshlrev_b32 v{t}, 16, v{q}
                v_and_b32 v{t+1}, 0xffff0000, v{q}
                v_lshlrev_b32 v{t+2}, 16, v{q+2}
                v_and_b32 v{t+3}, 0xffff0000, v{q+2}
                v_pk_fma_f32 {v(b,2)}, {v(t,2)}, v[40:41], {v(b,2)}
                v_pk_fma_f32 {v(b+2,2)}, {v(t+2,2)}, v[40:41], {v(b+2,2)}
                ds_write2_b32 v44, v{b}, v{b+2} offset0:{128*(rnd&1)} offset1:{128*(rnd&1)+1}
                ds_write2_b32 v45, v{b+1}, v{b+3} offset0:{128*(rnd&1)} offset1:{128*(rnd&1)+1}""")
            if rnd == 1:
                i("v_add_u32 v44, 1024, v44"); i("v_add_u32 v45, 1024, v45")
        i("s_waitcnt lgkmcnt(0)")
        i("s_barrier")
        i(f"""s_cmp_lg_u32 s2, 0
            s_cbranch_scc1 L_noep
            s_cmp_lg_u32 s34, 4
            s_cbranch_scc1 L_noep
            v_mov_b32 v48, s32
            v_mov_b32 v49, {EPO}
            s_mov_b64 exec, 1
            buffer_store_dword v48, v49, s[28:31], 0 offen sc1
            s_mov_b64 exec, -1""")
        a.label("L_noep")

    def ds(self, text, tag=None):
        self.i(text); self.q.append(tag)
    def need(self, *tags):
        idx = max((k for k, t in enumerate(self.q) if t in tags), default=-1)
        if idx >= 0:
            n = len(self.q) - 1 - idx
            self.i(f"s_waitcnt lgkmcnt({min(n, 15)})")
            self.q = self.q[idx+1:] if n <= 15 else self.q[len(self.q)-15:]
    def cmul(self, d, x, y):
        self.i(f"v_pk_mul_f32 {v(d,2)}, {v(x,2)}, {v(y,2)} op_sel:[0,0] op_sel_hi:[0,1]")
        self.i(f"v_pk_fma_f32 {v(d,2)}, {v(x,2)}, {v(y,2)}, {v(d,2)} op_sel:[1,1,0] op_sel_hi:[1,0,1] neg_lo:[0,1,0]")

    def partB(self):
        a = self.a; i = self.i
        a.label("L_B")
        for k in range(6): self.srd(4+4*k, 32+8*k, 229376)
        i("s_load_dwordx2 s[42:43], s[0:1], 80")
        i(f"""s_and_b32 s35, s2, 7
            s_mul_i32 s35, s35, 28
            s_sub_u32 s36, s2, 256
            s_lshr_b32 s36, s36, 3
            s_add_u32 s35, s35, s36
            s_lshr_b32 s36, s34, 2
            s_and_b32 s37, s34, 3
            s_sub_u32 s38, 3, s37
            s_cmp_eq_u32 s36, 0
            s_cselect_b32 s38, s37, s38
            s_mul_i32 s39, s34, {RG}
            s_mov_b32 m0, s39
            s_lshl_b32 s46, s35, 10
            s_lshl_b32 s47, s35, 2
            v_lshlrev_b32 v30, 1, v0
            s_waitcnt lgkmcnt(0)""")
        for k in range(6):
            i(f"buffer_load_short_d16_hi v{24+k}, v30, s[{4+4*k}:{7+4*k}], s46 offen")
        i(f"""s_load_dword s48, s[42:43], s47
            s_mov_b32 s46, {EPO}
            s_load_dword s32, s[28:29], s46""")
        i(f"""v_mov_b32 v40, v1
            v_mov_b32 v41, v2
            v_mov_b32 v42, v3
            v_lshlrev_b32 v43, 4, v40
            s_mul_i32 s49, s36, {4*RG}
            s_mul_i32 s50, s36, {USTR}
            s_add_u32 s50, s50, {UA}
            v_and_b32 v44, 31, v40
            v_mul_u32_u24 v1, 272, v44
            v_lshrrev_b32 v45, 5, v40
            v_lshl_add_u32 v1, v45, 4, v1
            v_add_u32 v1, s39, v1
            v_add_u32 v7, s39, v43
            v_add_u32 v14, s50, v43
            v_add_u32 v15, s49, v43
            v_lshlrev_b32 v13, 5, v41
            v_lshl_add_u32 v13, v42, 4, v13
            v_add_u32 v13, s50, v13
            v_lshlrev_b32 v22, 4, v0""")
        i(f"""v_mov_b32 v48, 0
            v_mov_b32 v49, 0
            v_mov_b32 v50, 0
            v_mov_b32 v51, 0
            v_mul_u32_u24 v46, {USTR}, v45
            v_lshl_add_u32 v46, v44, 4, v46
            v_add_u32 v46, {UA}, v46
            ds_write_b128 v46, v[48:51]
            v_and_b32 v46, 127, v0
            v_lshlrev_b32 v46, 4, v46
            v_add_u32 v46, {K2A}, v46
            ds_write_b128 v46, v[48:51]""")
        i(f"""v_sub_u32 v46, 15, v41
            v_and_b32 v47, 3, v46
            v_mul_u32_u24 v8, {RG+64}, v47
            v_and_b32 v46, 12, v46
            v_lshl_add_u32 v8, v46, 1, v8
            v_lshl_add_u32 v8, v42, 4, v8
            v_add_u32 v8, s49, v8
            v_add_u32 v8, {KCO}, v8""")
        i(f"""v_lshrrev_b32 v46, 2, v0
            v_and_b32 v47, 3, v0
            v_lshlrev_b32 v9, 14, v46
            v_lshl_add_u32 v9, v47, 4, v9
            v_lshlrev_b32 v10, 10, v47
            v_lshl_add_u32 v10, v46, 1, v10
            v_add_u32 v10, {UA+U0}, v10
            v_and_b32 v12, 1, v0
            v_mul_u32_u24 v52, {USTR}, v12
            v_sub_u32 v11, v10, v52
            v_add_u32 v11, {USTR}, v11
            v_add_u32 v10, v10, v52
            v_lshlrev_b32 v12, 4, v12
            v_mul_u32_u24 v21, {RG+32}, v47
            v_lshl_add_u32 v21, v46, 2, v21
            v_add_u32 v21, {OTO}, v21
            s_mul_i32 s51, s38, {RG+32}
            s_add_u32 s51, s51, s49
            s_add_u32 s51, s51, {OTO}
            v_add_u32 v20, s51, v43""")
        i(f"""v_lshrrev_b32 v46, 2, v41
            v_and_b32 v47, 3, v41
            v_and_b32 v52, 1, v46
            v_mul_u32_u24 v53, {RG-128}, v52
            v_sub_u32 v16, {RG}, v53
            v_lshl_add_u32 v16, v42, 6, v16
            v_lshl_add_u32 v16, v46, 3, v16
            v_lshl_add_u32 v16, v47, 3, v16
            v_add_u32 v16, s49, v16
            v_mul_u32_u24 v53, {RG-48}, v52
            v_sub_u32 v17, {3*RG}, v53
            v_lshl_add_u32 v17, v42, 7, v17
            v_lshl_add_u32 v17, v46, 4, v17
            v_lshl_add_u32 v17, v47, 3, v17
            v_add_u32 v17, s49, v17
            s_lshl_b32 s52, s36, 9
            s_add_u32 s52, s52, {K2A}
            s_mul_i32 s53, s36, 320
            s_add_u32 s53, s53, {K3A}
            v_sub_u32 v46, 15, v41
            v_lshlrev_b32 v47, 4, v42
            v_lshl_add_u32 v18, v46, 3, v47
            v_add_u32 v18, s52, v18
            v_lshl_add_u32 v19, v46, 2, v47
            v_add_u32 v19, s53, v19""")
        i("s_cmp_eq_u32 s37, 3")
        i("s_cbranch_scc1 L_Bsh3")
        i(f"""s_mul_i32 s54, s37, 60
            s_sub_u32 s54, s54, 21
            v_mul_u32_u24 v46, 15, v42
            v_add3_u32 v46, v46, v41, s54
            v_bfe_u32 v47, v46, 1, 5
            v_and_b32 v52, 1, v46
            v_lshl_add_u32 v47, v52, 5, v47
            v_and_b32 v52, 64, v46
            v_add_u32 v47, v47, v52
            v_lshlrev_b32 v2, 4, v47
            v_mov_b32 v52, 0x80
            v_cmp_gt_u32 vcc, v52, v46
            v_cndmask_b32 v3, 0, -1, vcc
            v_mov_b32 v4, v3
            v_cmp_eq_u32 vcc, v52, v46
            v_mov_b32 v53, 0xffff0000
            v_mov_b32 v54, 3072
            v_cndmask_b32 v3, v3, v53, vcc
            v_cndmask_b32 v4, v4, -1, vcc
            v_cndmask_b32 v2, v2, v54, vcc
            v_mov_b32 v54, {3072+63*16}
            v_cmp_eq_u32 vcc, -15, v46
            v_cndmask_b32 v4, v4, v53, vcc
            v_cndmask_b32 v2, v2, v54, vcc
            v_mov_b32 v53, 0xffff
            v_cmp_eq_u32 vcc, -16, v46
            v_cndmask_b32 v3, v3, v53, vcc
            v_cndmask_b32 v2, v2, v54, vcc
            v_add_u32 v2, s49, v2
            v_sub_u32 v5, 135, v46
            v_cmp_le_i32 s[44:45], 0, v5
            v_cmp_ne_u32 vcc, 0, v41
            v_lshlrev_b32 v5, 3, v5
            v_add_u32 v5, s49, v5
            v_add_u32 v5, {KCO}, v5
            s_and_b64 s[44:45], s[44:45], vcc
            s_branch L_Bsh4""")
        a.label("L_Bsh3")
        i(f"""v_add_u32 v2, 2048, v15
            v_sub_u32 v46, 31, v44
            v_lshlrev_b32 v5, 2, v46
            v_add_u32 v5, 128, v5
            v_add_u32 v5, s52, v5
            v_lshlrev_b32 v4, 1, v46
            v_add_u32 v4, s53, v4
            v_mov_b32 v3, 0
            s_mov_b64 s[44:45], 0""")
        a.label("L_Bsh4")
        a.flush()
        i("s_waitcnt lgkmcnt(0)")
        self.tags()
        i(f"""s_lshl_b32 s46, s48, 16
            s_and_b32 s47, s48, 0xffff0000
            s_cmp_eq_u32 s36, 0
            s_cselect_b32 s48, s46, s47
            v_mov_b32 v44, {fh(math.log2(math.e))}
            v_mul_f32 v45, s48, v44
            v_exp_f32 v45, v45
            s_lshl_b32 s46, s35, 6
            s_add_u32 s46, s46, {XO}
            s_add_u32 s47, s46, {128*16384}
            s_lshl_b32 s54, s35, 14
            s_add_u32 s54, s54, {BO}
            s_add_u32 s55, s54, 8192
            v_cvt_pk_bf16_f32 v45, v45, v45
            v_lshlrev_b32 v46, 16, v45
            v_mul_f32 v44, v44, v46
            v_mul_f32 v45, 0.15915494, v46""")
        i("s_waitcnt vmcnt(0)")
        self.stamp(1)
        self.kgen()
        self.stamp(2)
        self.builder()
        self.stamp(3)
        for k in range(1, 4):
            i(f"s_cmp_eq_u32 s38, {k}")
            i(f"s_cbranch_scc1 L_conv{k}")
        for k in range(4):
            a.label(f"L_conv{k}")
            self.conv(k)
            if k < 3:
                i("s_branch L_Bout")
        a.label("L_Bout")
        i("s_waitcnt lgkmcnt(0)")
        i("s_barrier")
        Q = [32, 36]
        for k, q in enumerate(Q):
            i(f"ds_read_b32 v{q}, v21 offset:{512*k}")
            i(f"ds_read_b32 v{q+2}, v21 offset:{512*k+4*RG}")
        for k, q in enumerate(Q):
            i(f"s_waitcnt lgkmcnt({2-2*k})")
            i(f"buffer_store_dwordx4 {v(q,4)}, v22, s[28:31], s{54+k} offen sc1")
        self.dump_stamps(10)
        i("s_endpgm")

    def kgen(self):
        i = self.i
        E1, E8, H = 30, 32, 34
        i("v_pk_mul_f32 v[24:25], v[24:25], v[44:45]")
        self.cmul(36, 28, 26)
        def evalE(d, k, t):
            if k == 1: x = 24
            else:
                x = t
                i(f"v_mul_f32 v{t}, {fh(float(k))}, v24")
                i(f"v_mul_f32 v{t+1}, {fh(float(k))}, v25")
            i(f"v_fract_f32 v{t+1}, v{x+1}")
            i(f"v_exp_f32 v{t}, v{x}")
            i(f"v_cos_f32 v{d}, v{t+1}")
            i(f"v_sin_f32 v{d+1}, v{t+1}")
        evalE(E1, 1, 38); evalE(H, 256, 40); evalE(E8, 8, 42)
        i("v_pk_mul_f32 v[36:37], v[36:37], v[46:47] op_sel_hi:[1,0]")
        i(f"v_pk_mul_f32 {v(E1,2)}, {v(E1,2)}, v[38:39] op_sel_hi:[1,0]")
        i(f"v_pk_mul_f32 {v(H,2)}, {v(H,2)}, v[40:41] op_sel_hi:[1,0]")
        i(f"v_pk_mul_f32 {v(E8,2)}, {v(E8,2)}, v[42:43] op_sel_hi:[1,0]")
        self.tc = 0
        def put(x, rows, neg=True):
            t = 44 + (self.tc & 3); self.tc += 1
            i(f"v_cvt_pk_bf16_f32 v{t}, v{x}, {'-' if neg else ''}v{x+1}")
            for r in rows: i(f"ds_write_addtid_b32 v{t} offset:{272*r}")
        cur, nxt = 36, 38
        for k in range(8):
            put(cur, [k])
            if k < 7: self.cmul(nxt, cur, E1)
            if k == 0: self.cmul(24, cur, H); put(24, [8, 9])
            if k == 2: self.cmul(40, cur, H); put(40, [10])
            if k == 4: self.cmul(26, cur, H); put(26, [11, 12, 13])
            if k == 6: self.cmul(40, cur, H); put(40, [14])
            cur, nxt = nxt, cur
        self.cmul(28, 24, E8); put(28, [15])
        self.cmul(36, 26, H); put(36, [16])
        self.cmul(38, 28, H); put(38, [17])
        self.cmul(40, 36, H); put(40, [18])
        self.cmul(42, 38, H); put(42, [19, 28, 31])
        self.cmul(36, 24, H); put(36, [24, 25, 26])
        self.cmul(38, 42, H); put(38, [20])
        self.cmul(40, 38, H); put(40, [21])
        self.cmul(38, 40, H); put(38, [22])
        self.cmul(40, 38, H); put(40, [23])
        for st in range(8): i(f"ds_read_b128 {v(64+4*st,4)}, v1 offset:{32*st}")
        i("v_mov_b32 v44, 0x3f80")
        i("ds_write_addtid_b32 v44 offset:0")
        self.tc = 1
        put(E8, [1], neg=False)
        cur, nxt = E8, 36
        for k in range(2, 32):
            self.cmul(nxt, cur, E8)
            put(nxt, [k], neg=False)
            cur, nxt = nxt, (38 if nxt == 36 else 36)
        for st in range(8): i(f"ds_read_b128 {v(96+4*st,4)}, v1 offset:{32*st}")
        self.issue_gather([32, 36], 9, [46, 47])
        for st in range(8):
            i(f"s_waitcnt lgkmcnt({7-st})")
            i(f"v_mfma_f32_32x32x16_bf16 v[48:63], {v(64+4*st,4)}, {v(96+4*st,4)}, {'0' if st == 0 else 'v[48:63]'}")
        for g in range(4): i(f"ds_write_b128 v7, {v(48+4*g,4)} offset:{1024*g}")
        i("s_waitcnt lgkmcnt(0)")
        i("s_barrier")

    def builder(self):
        i = self.i; a = self.a
        for k in range(4): i(f"ds_read_b128 {v(64+4*k,4)}, v2 offset:{k*RG}")
        i("s_waitcnt lgkmcnt(2)")
        i("v_pk_add_f32 v[64:65], v[64:65], v[68:69]")
        i("v_pk_add_f32 v[66:67], v[66:67], v[70:71]")
        i("s_waitcnt lgkmcnt(0)")
        i("v_pk_add_f32 v[72:73], v[72:73], v[76:77]")
        i("v_pk_add_f32 v[74:75], v[74:75], v[78:79]")
        i("v_pk_add_f32 v[64:65], v[64:65], v[72:73]")
        i("v_pk_add_f32 v[66:67], v[66:67], v[74:75]")
        i("v_cvt_pk_bf16_f32 v70, v67, v66")
        i("v_cvt_pk_bf16_f32 v71, v65, v64")
        i("s_cmp_eq_u32 s37, 3")
        i("s_cbranch_scc1 L_Bb3")
        i(f"""v_and_b32 v72, v3, v70
            v_and_b32 v73, v4, v71
            v_and_b32 v74, v4, v71
            v_mov_b32_dpp v75, v72 row_shr:1 row_mask:0xf bank_mask:0xf
            v_mov_b32_dpp v80, v73 row_shr:1 row_mask:0xf bank_mask:0xf
            v_alignbit_b32 v76, v73, v72, 16
            v_alignbit_b32 v77, v75, v73, 16
            v_alignbit_b32 v78, v75, v73, 16
            v_alignbit_b32 v79, v80, v75, 16
            s_mov_b64 exec, s[44:45]
            ds_write_b64 v5, v[72:73]
            ds_write_b64 v5, v[76:77] offset:{RG+64}
            ds_write_b64 v5, v[74:75] offset:{2*(RG+64)}
            ds_write_b64 v5, v[78:79] offset:{3*(RG+64)}
            s_branch L_Bb4""")
        a.label("L_Bb3")
        i(f"""s_mov_b64 exec, 0xffffffff
            ds_write_b32 v5, v71 offset:128
            ds_write_b32 v5, v70
            s_not_b64 exec, exec
            ds_write_b16_d16_hi v4, v71 offset:192
            ds_write_b16 v4, v71 offset:128
            ds_write_b16_d16_hi v4, v70 offset:64
            ds_write_b16 v4, v70""")
        a.label("L_Bb4")
        i("s_mov_b64 exec, -1")
        i("s_waitcnt lgkmcnt(0)")
        i("s_barrier")
        AF = lambda f: 56 + 4*f
        for f in list(range(8)) + [16]:
            delta = 2*(f >> 1) + 16*(f & 1) if f < 16 else 32
            for h in range(2): i(f"ds_read_b64 {v(AF(f)+2*h,2)}, v8 offset:{32*(32-delta)+8*h}")
        i(f"""s_lshl_b32 s56, s37, 3
            s_lshr_b32 s56, 0x00300080, s56
            s_and_b32 s56, s56, 0xff
            s_add_u32 s56, s56, s39
            v_mov_b32 v44, s56
            v_mov_b32 v40, 0
            v_mov_b32 v41, 0
            v_mov_b32 v42, 0
            v_mov_b32 v43, 0
            s_mov_b64 exec, 1
            ds_write_b128 v44, v[40:43]
            s_mov_b64 exec, -1""")
        self.check_gather("Lxg", [32, 36], 9, [46, 47], 23)
        self.stamp(4)
        for k, q in enumerate([32, 36]):
            for e in range(2):
                i(f"v_alignbit_b32 v{q+2*e}, v{q+2*e}, v{q+2*e}, v12")
        for k, q in enumerate([32, 36]):
            for e in range(2):
                i(f"ds_write_b16 v10, v{q+2*e} offset:{512*e+256*k}")
                i(f"ds_write_b16_d16_hi v11, v{q+2*e} offset:{512*e+256*k}")
        i("s_waitcnt lgkmcnt(0)")
        i("s_barrier")

    def conv(self, ci):
        i = self.i
        self.q = []
        n0, n1 = 2*ci, 2*ci+1
        AF = lambda f: 56 + 4*f
        acc = {n0: 24, n1: 28}
        first = {n0: True, n1: True}
        SB = [[32, 36, 40], [44, 48, 52]]
        def bload(reg, n, d, tag): self.ds(f"ds_read_b128 {v(reg,4)}, v13 offset:{U0 + 512*n - 64*d - 32}", tag)
        def mm(n, A, B):
            self.mf(acc[n], A, B, first[n]); first[n] = False
        steps = []
        for d in range(8):
            ld = [(0, n1, d), (1, n0, d)] + ([(2, n0-1, d)] if n0 >= 1 else [])
            mf = [(n1, 2*d, 0), (n0, 2*d, 1), (n1, 2*d+1, 1)] + ([(n0, 2*d+1, 2)] if n0 >= 1 else [])
            if d == 0 and n0 >= 2: mf.append((n1, 16, 2))
            steps.append((ld, mf))
        if n0 >= 2:
            ld = [(0, n0-2, 0)]; mf = [(n0, 16, 0)]
            if n0 >= 4:
                ld += [(1, n1-4, 0), (2, n0-4, 0)]; mf += [(n1, 17, 1), (n0, 17, 2)]
            steps.append((ld, mf))
        F = []
        W, T, O, X = 88, 104, 112, 124
        full = ci < 2
        so = U0 + 1024*ci
        F.append(lambda: self.ds(f"ds_read_b64 {v(T,2)}, v14 offset:{so-24}", "raw"))
        F.append(lambda: self.ds(f"ds_read_b64 {v(T+2,2)}, v14 offset:{so-16}", "raw"))
        F.append(lambda: self.ds(f"ds_read_b64 {v(T+4,2)}, v14 offset:{so-8}", "raw"))
        F.append(lambda: self.ds(f"ds_read_b64 {v(T+6,2)}, v14 offset:{so}", "raw"))
        pre = len(F)
        F.append(lambda: self.need("raw"))
        jr = range(8) if full else range(1, 7)
        for j in jr:
            F.append(lambda j=j: i(f"v_lshlrev_b32 v{W+2*j}, 16, v{T+j}"))
            F.append(lambda j=j: i(f"v_and_b32 v{W+2*j+1}, 0xffff0000, v{T+j}"))
        for j in jr: F.append(lambda j=j: i(f"v_add_f32 v{T+j}, v{W+2*j}, v{W+2*j+1}"))
        add = lambda d, x, y: F.append(lambda: i(f"v_add_f32 v{d}, v{x}, v{y}"))
        cvt = lambda d, x, y: F.append(lambda: i(f"v_cvt_pk_bf16_f32 v{d}, v{x}, v{y}"))
        SO = [128, 0, 48, 0]
        wr = lambda s, r: F.append(lambda: self.ds(f"ds_write_b128 v15, {v(r,4)} offset:{s*RG + SO[s] + 16 + 1024*ci}", "sw"))
        for j in range(2, 6):
            add(X, W+2*j-1, T+j); add(X+1, T+j, W+2*j+2)
            add(X+2, T+j-1, X+1); add(X+3, X, T+j+1)
            cvt(O+j-2, X, X+1); cvt(O+4+j-2, X+2, X+3)
        wr(0, O); wr(1, O+4)
        if full:
            F.append(lambda: self.need("sw"))
            for j in range(2, 6):
                add(X+2, T+j-1, T+j); add(X+2, X+2, T+j+1)
                add(X, W+2*j-3, X+2); add(X+1, X+2, W+2*j+4)
                add(X+2, T+j-2, X+1); add(X+3, X, T+j+2)
                cvt(O+j-2, X, X+1); cvt(O+4+j-2, X+2, X+3)
            wr(2, O); wr(3, O+4)
        F.append(lambda: self.need("sw"))
        late = list(range(8, 16)) + ([17] if n0 >= 4 else [])
        for f in late:
            delta = 2*(f >> 1) + 16*(f & 1) if f < 16 else -4
            for h in range(2):
                F.append(lambda f=f, h=h, delta=delta: self.ds(f"ds_read_b64 {v(AF(f)+2*h,2)}, v8 offset:{32*(32-delta)+8*h}", f"A{f}"))
        lam = sorted({2*n-k for n in (n0, n1) for k in range(max(0, 2*n-8), 2*n-2)})
        nu = sorted({n-k for n in (n0, n1) for k in range(0, n-3)})
        kslots = [AF(f) for f in range(8)] + [AF(8), AF(9)]
        K2R = {l: kslots[k] for k, l in enumerate(lam)}
        K3R = {u: kslots[len(lam)+k] for k, u in enumerate(nu)}
        G = []
        for l in lam:
            for h in range(2):
                G.append((K2R[l], lambda l=l, h=h: self.ds(f"ds_read_b64 {v(K2R[l]+2*h,2)}, v18 offset:{64*(8-l)+8*h}", "K")))
        for u in nu:
            for h in range(2):
                G.append((K3R[u], lambda u=u, h=h: self.ds(f"ds_read2_b32 {v(K3R[u]+2*h,2)}, v19 offset0:{16*(7-u)+2*h} offset1:{16*(7-u)+2*h+1}", "K")))
        def loads(s):
            for (slot, n, d) in steps[s][0]: bload(SB[s & 1][slot], n, d, f"B{s}_{slot}")
        loads(0)
        for _ in range(pre): F.pop(0)()
        nm_first = sum(len(steps[s][1]) for s in range(4))
        per = -(-len(F) // nm_first)
        for s in range(len(steps)):
            if s + 1 < len(steps): loads(s+1)
            if s == 4:
                while F: F.pop(0)()
            for (n, f, slot) in steps[s][1]:
                self.need(f"B{s}_{slot}", f"A{f}")
                mm(n, AF(f), SB[s & 1][slot])
                if s < 4:
                    for _ in range(per):
                        if F: F.pop(0)()
                else:
                    for _ in range(2):
                        if G and (G[0][0] < AF(8) or s >= 5): G.pop(0)[1]()
        while G: G.pop(0)[1]()
        self.stamp(5)
        i("s_waitcnt lgkmcnt(0)"); self.q = []
        i("s_barrier")
        free = [32, 36, 40, 44, 48, 52] + [AF(f) for f in range(10, 18)]
        work = []
        k2 = sorted({k for n in (n0, n1) for k in range(max(0, 2*n-8), 2*n-2)})
        k3 = sorted({k for n in (n0, n1) for k in range(0, n-3)})
        for k in k2:
            r = free.pop(0)
            for h in range(2): self.ds(f"ds_read_b64_tr_b16 {v(r+2*h,2)}, v16 offset:{256*k+32*h}", f"s2_{k}")
            work += [(n, r, K2R[2*n-k], f"s2_{k}") for n in (n0, n1) if max(0, 2*n-8) <= k <= 2*n-3]
        for k in k3:
            r = free.pop(0)
            for h in range(2): self.ds(f"ds_read_b64_tr_b16 {v(r+2*h,2)}, v17 offset:{512*k+64*h}", f"s3_{k}")
            work += [(n, r, K3R[n-k], f"s3_{k}") for n in (n0, n1) if k <= n-4]
        for (n, r, kr, tag) in work:
            self.need(tag)
            mm(n, r, kr)
        for k in range(2):
            i(f"v_mov_b32 v{33+4*k}, s32"); i(f"v_mov_b32 v{35+4*k}, s33")
        for r in range(4): i(f"v_cvt_pk_bf16_f32 v{40+r}, v{24+r}, v{28+r}")
        i("ds_write_b128 v20, v[40:43]")
        self.stamp(6)

    def build(self):
        a = self.a
        hdr = open("gated_mix__spectral_gfnet__ssm_conv_s4__prompt.s.ref").read().split("; Override launch")[0]
        a.raw(hdr.rstrip("\n"))
        a.raw(f"; @launch grid=(480,1,1) block=(512,1,1) lds={LDS}")
        a.raw('.amdgcn_target "amdgcn-amd-amdhsa--gfx950"\n.text')
        a.raw(f".globl {NAME}\n.p2align 8\n.type {NAME},@function\n{NAME}:")
        self.prologue(); self.partA(); self.partB()
        a.label("L_end"); self.i("s_endpgm"); a.label("L_code_end")
        a.raw(f""".section .rodata,"a"
.p2align 6
.amdhsa_kernel {NAME}
  .amdhsa_next_free_vgpr 128
  .amdhsa_next_free_sgpr 96
  .amdhsa_accum_offset 128
  .amdhsa_group_segment_fixed_size 0
  .amdhsa_kernarg_size 128
  .amdhsa_user_sgpr_count 2
  .amdhsa_user_sgpr_kernarg_segment_ptr 1
  .amdhsa_system_sgpr_workgroup_id_x 1
.end_amdhsa_kernel""")
        return a.render()

if __name__ == "__main__":
    g = Gen(dbg=False); s = g.build()
    open("gated_mix__spectral_gfnet__ssm_conv_s4__prompt.s", "w").write(s)
    print("nops", g.a.nnop, "lines", s.count("\n"))
    g = Gen(dbg=True); open("dbg.s", "w").write(g.build())
    import json
    for spec in sys.argv[1:]:
        nm, js = spec.split("=", 1)
        o = json.loads(js)
        open(f"work/{nm}.s", "w").write(Gen(dbg=o.get("dbg", True), opt=o).build())
```

```python
import sys
def kd(name, vg=64, sg=48):
    return f""".section .rodata,"a"
.p2align 6
.amdhsa_kernel {name}
  .amdhsa_next_free_vgpr {vg}
  .amdhsa_next_free_sgpr {sg}
  .amdhsa_accum_offset {vg}
  .amdhsa_group_segment_fixed_size 0
  .amdhsa_kernarg_size 128
  .amdhsa_user_sgpr_count 2
  .amdhsa_user_sgpr_kernarg_segment_ptr 1
  .amdhsa_system_sgpr_workgroup_id_x 1
.end_amdhsa_kernel
.text
"""
YOFF=0; ZOFF=4<<20; STAMP=16<<20
def prolog(name):
    return f""".globl {name}
.p2align 8
.type {name},@function
{name}:
    s_memrealtime s[30:31]
    s_cmp_ge_u32 s2, 256
    s_cbranch_scc1 L_{name}_end
    s_load_dwordx2 s[4:5], s[0:1], 0
    s_load_dwordx2 s[6:7], s[0:1], 104
    s_load_dwordx2 s[8:9], s[0:1], 120
    s_and_b32 s3, s2, 7
    s_lshl_b32 s3, s3, 5
    s_lshr_b32 s24, s2, 3
    s_add_u32 s3, s3, s24       ; s3 = s0
    s_waitcnt lgkmcnt(0)
    s_mov_b32 s12, s4
    s_mov_b32 s13, s5
    s_mov_b32 s14, 1835008
    s_mov_b32 s15, 0x20000
    s_mov_b32 s16, s6
    s_mov_b32 s17, s7
    s_mov_b32 s18, 1835008
    s_mov_b32 s19, 0x20000
    s_mov_b32 s20, s8
    s_mov_b32 s21, s9
    s_mov_b32 s22, 0x10000000
    s_mov_b32 s23, 0x20000
"""
def stamp(slot, reg):
    return f"""    s_lshl_b32 s25, s2, 6
    s_add_u32 s25, s25, {STAMP + slot*4}
    v_mov_b32 v40, s{reg}
    v_mov_b32 v41, 0
    v_cmp_eq_u32 vcc, 0, v0
    s_and_saveexec_b64 s[26:27], vcc
    buffer_store_dword v40, v41, s[20:23], s25 offen
    s_mov_b64 exec, s[26:27]
"""
def now(reg):
    return f"""    s_memrealtime s[{reg}:{reg+1}]
    s_waitcnt lgkmcnt(0)
"""
def load_x():
    return """    v_lshrrev_b32 v1, 5, v0
    v_lshlrev_b32 v1, 8, v1
    v_add_u32 v1, s3, v1
    v_mul_u32_u24 v1, 896, v1
    v_and_b32 v2, 31, v0
    v_lshlrev_b32 v2, 4, v2
    v_add_u32 v1, v1, v2
    buffer_load_dwordx4 v[4:7], v1, s[12:15], 0 offen
    buffer_load_dwordx4 v[8:11], v1, s[12:15], 0 offen offset:384
    s_waitcnt vmcnt(0)
"""
def scatter(off, pat, flags):
    s = "    v_mov_b32 v4, 0x12345678\n    v_mov_b32 v8, 0x12345678\n"
    if pat == 16:
        s += f"""    v_lshlrev_b32 v1, 13, v0
    s_lshl_b32 s25, s3, 4
    s_add_u32 s25, s25, {off}
    s_add_u32 s28, s25, 4096
    buffer_store_dwordx4 v[4:7], v1, s[20:23], s25 offen {flags}
    buffer_store_dwordx4 v[8:11], v1, s[20:23], s28 offen {flags}
"""
    else:
        s += f"""    v_lshrrev_b32 v1, 1, v0
    v_lshlrev_b32 v1, 13, v1
    v_and_b32 v2, 1, v0
    v_lshlrev_b32 v2, 4, v2
    v_add_u32 v1, v1, v2
    s_lshl_b32 s25, s3, 5
    s_add_u32 s25, s25, {off}
    s_add_u32 s28, s25, {128*8192}
    buffer_store_dwordx4 v[4:7], v1, s[20:23], s25 offen {flags}
    buffer_store_dwordx4 v[8:11], v1, s[20:23], s28 offen {flags}
"""
    return s
def gather(off, poll, lab, flags):
    s = f"""    v_lshlrev_b32 v1, 4, v0
    s_lshl_b32 s25, s3, 13
    s_add_u32 s25, s25, {off}
    s_add_u32 s28, s25, 4096
    s_mov_b32 s29, 0
{lab}:
    buffer_load_dwordx4 v[4:7], v1, s[20:23], s25 offen {flags}
    buffer_load_dwordx4 v[8:11], v1, s[20:23], s28 offen {flags}
    s_waitcnt vmcnt(0)
"""
    if poll:
        s += f"""    v_xor_b32 v12, 0x12345678, v4
    v_xor_b32 v13, 0x12345678, v8
    v_or_b32 v12, v12, v13
    v_cmp_ne_u32 vcc, 0, v12
    s_add_u32 s29, s29, 1
    s_cmp_gt_u32 s29, 20000
    s_cbranch_scc1 {lab}_x
    s_cbranch_vccnz {lab}
{lab}_x:
    s_barrier
"""
    return s
def store_out():
    return """    v_lshrrev_b32 v1, 5, v0
    v_lshlrev_b32 v1, 8, v1
    v_add_u32 v1, s3, v1
    v_mul_u32_u24 v1, 896, v1
    v_and_b32 v2, 31, v0
    v_lshlrev_b32 v2, 4, v2
    v_add_u32 v1, v1, v2
    buffer_store_dwordx4 v[4:7], v1, s[16:19], 0 offen
    buffer_store_dwordx4 v[8:11], v1, s[16:19], 0 offen offset:384
"""
def end(name):
    return f"L_{name}_end:\n    s_endpgm\n" + kd(name)

def multi(pat):
    h = "".join(f"; @launch kernel=k{i}_kernel grid=(256,1,1) block=(256,1,1) lds=0\n" for i in (1,2,3))
    h += '.amdgcn_target "amdgcn-amd-amdhsa--gfx950"\n.text\n'
    s = h
    s += prolog("k1_kernel") + load_x() + now(32) + scatter(YOFF, pat, "") + "    s_waitcnt vmcnt(0)\n" + now(34) + stamp(0,30)+stamp(1,32)+stamp(2,34) + end("k1_kernel")
    s += prolog("k2_kernel") + gather(YOFF, False, "Lg2", "") + now(32) + scatter(ZOFF, pat, "") + "    s_waitcnt vmcnt(0)\n" + now(34) + stamp(3,30)+stamp(4,32)+stamp(5,34) + end("k2_kernel")
    s += prolog("k3_kernel") + gather(ZOFF, False, "Lg3", "") + now(32) + store_out() + "    s_waitcnt vmcnt(0)\n" + now(34) + stamp(6,30)+stamp(7,32)+stamp(8,34) + end("k3_kernel")
    return s
def fused(pat, fl):
    h = "; @launch kernel=k1_kernel grid=(256,1,1) block=(256,1,1) lds=0\n"
    h += '.amdgcn_target "amdgcn-amd-amdhsa--gfx950"\n.text\n'
    s = h
    s += prolog("k1_kernel") + load_x() + now(32) + scatter(YOFF, pat, fl)
    s += gather(YOFF, True, "Lg2", fl) + "    s_mov_b32 s40, s29\n" + now(34) + scatter(ZOFF, pat, fl)
    s += gather(ZOFF, True, "Lg3", fl) + "    s_mov_b32 s41, s29\n" + now(36) + store_out() + "    s_waitcnt vmcnt(0)\n" + now(38)
    s += stamp(0,30)+stamp(1,32)+stamp(4,34)+stamp(7,36)+stamp(8,38)+stamp(9,40)+stamp(10,41) + end("k1_kernel")
    return s
open("mb1_m16.s","w").write(multi(16))
open("mb1_m32.s","w").write(multi(32))
open("mb1_f16.s","w").write(fused(16,"sc1"))
open("mb1_f32.s","w").write(fused(32,"sc1"))
open("mb1_g32.s","w").write(fused(32,"sc0 sc1"))
```

```python
import sys; sys.path.insert(0,"work")
from mb1 import *
FLAG = 20<<20
def outbox(off, flags):
    return f"""    v_mov_b32 v4, 0x12345678
    v_mov_b32 v8, 0x12345678
    v_lshlrev_b32 v1, 4, v0
    s_lshl_b32 s25, s3, 13
    s_add_u32 s25, s25, {off}
    s_add_u32 s28, s25, 4096
    buffer_store_dwordx4 v[4:7], v1, s[20:23], s25 offen {flags}
    buffer_store_dwordx4 v[8:11], v1, s[20:23], s28 offen {flags}
"""
def gath_addr(off):
    return f"""    v_lshrrev_b32 v1, 1, v0
    v_lshlrev_b32 v1, 13, v1
    v_and_b32 v2, 1, v0
    v_lshlrev_b32 v2, 4, v2
    v_add_u32 v1, v1, v2
    s_lshl_b32 s25, s3, 5
    s_add_u32 s25, s25, {off}
    s_add_u32 s28, s25, {128*8192}
"""
def gather_tag(off, lab, flags, sleep):
    return gath_addr(off) + f"""    s_mov_b32 s29, 0
    s_mov_b64 s[42:43], -1
    s_mov_b64 s[44:45], -1
{lab}:
    s_mov_b64 exec, s[42:43]
    s_cbranch_execz {lab}_a
    buffer_load_dwordx4 v[4:7], v1, s[20:23], s25 offen {flags}
{lab}_a:
    s_mov_b64 exec, s[44:45]
    s_cbranch_execz {lab}_b
    buffer_load_dwordx4 v[8:11], v1, s[20:23], s28 offen {flags}
{lab}_b:
    s_mov_b64 exec, -1
    s_waitcnt vmcnt(0)
    v_mov_b32 v12, 0x12345678
    v_cmp_ne_u32 s[42:43], v4, v12
    v_cmp_ne_u32 s[44:45], v8, v12
    s_add_u32 s29, s29, 1
    s_cmp_gt_u32 s29, 20000
    s_cbranch_scc1 {lab}_x
    s_or_b64 s[46:47], s[42:43], s[44:45]
    s_cbranch_scc0 {lab}_x
    s_sleep {sleep}
    s_branch {lab}
{lab}_x:
    s_barrier
"""
def signal(ph, pre=""):
    return f"""    s_waitcnt vmcnt(0)
    s_barrier
{pre}    s_lshl_b32 s25, s3, 2
    s_add_u32 s25, s25, {FLAG + ph*1024}
    v_mov_b32 v40, 0x12345678
    v_mov_b32 v41, 0
    v_cmp_eq_u32 vcc, 0, v0
    s_and_saveexec_b64 s[26:27], vcc
    s_cbranch_execz Lsig{ph}
    buffer_store_dword v40, v41, s[20:23], s25 offen sc1
Lsig{ph}:
    s_mov_b64 exec, s[26:27]
"""
def waitflags(ph, lab, sleep):
    return f"""    v_and_b32 v1, 63, v0
    v_lshlrev_b32 v1, 4, v1
    s_mov_b32 s25, {FLAG + ph*1024}
    s_mov_b32 s29, 0
    v_mov_b32 v12, 0x12345678
{lab}:
    buffer_load_dwordx4 v[16:19], v1, s[20:23], s25 offen sc1
    s_waitcnt vmcnt(0)
    v_xor_b32 v16, v16, v12
    v_xor_b32 v17, v17, v12
    v_xor_b32 v18, v18, v12
    v_xor_b32 v19, v19, v12
    v_or_b32 v16, v16, v17
    v_or3_b32 v16, v16, v18, v19
    v_cmp_ne_u32 vcc, 0, v16
    s_add_u32 s29, s29, 1
    s_cmp_gt_u32 s29, 20000
    s_cbranch_scc1 {lab}_x
    s_cbranch_vccz {lab}_x
    s_sleep {sleep}
    s_branch {lab}
{lab}_x:
"""
def waitflags1(ph, lab, sleep):
    return f"""    v_readfirstlane_b32 s48, v0
    s_mov_b32 s29, 0
    s_cmp_ge_u32 s48, 64
    s_cbranch_scc1 {lab}_y
""" + waitflags(ph, lab, sleep) + f"""{lab}_y:
    s_barrier
"""
def gather_plain(off, flags):
    return gath_addr(off) + f"""    buffer_load_dwordx4 v[4:7], v1, s[20:23], s25 offen {flags}
    buffer_load_dwordx4 v[8:11], v1, s[20:23], s28 offen {flags}
    s_waitcnt vmcnt(0)
"""
HDR = "; @launch kernel=k1_kernel grid=(256,1,1) block=(256,1,1) lds=0\n" + '.amdgcn_target "amdgcn-amd-amdhsa--gfx950"\n.text\n'
def fin():
    return store_out() + "    s_waitcnt vmcnt(0)\n" + now(38) + stamp(0,30)+stamp(1,32)+stamp(4,34)+stamp(7,36)+stamp(8,38)+stamp(9,40)+stamp(10,41)+stamp(2,50)+stamp(3,52) + "L_k1_kernel_end:\n    s_endpgm\n" + kd("k1_kernel", 64, 64)
def v1(sleep):
    s = HDR + prolog("k1_kernel") + load_x() + now(32) + outbox(YOFF, "sc1") + now(50) + now(52)
    s += gather_tag(YOFF, "Lg2", "sc1", sleep) + "    s_mov_b32 s40, s29\n" + now(34) + outbox(ZOFF, "sc1")
    s += gather_tag(ZOFF, "Lg3", "sc1", sleep) + "    s_mov_b32 s41, s29\n" + now(36) + fin()
    return s
def v2(sleep, wf):
    s = HDR + prolog("k1_kernel") + load_x() + now(32) + outbox(YOFF, "sc1") + signal(0) + now(50)
    s += wf(0, "Lg2", sleep) + now(52) + "    s_mov_b32 s40, s29\n" + gather_plain(YOFF, "sc1") + now(34) + outbox(ZOFF, "sc1") + signal(1)
    s += wf(1, "Lg3", sleep) + "    s_mov_b32 s41, s29\n" + gather_plain(ZOFF, "sc1") + now(36) + fin()
    return s
def v3(sleep, wf):
    rel = "    buffer_wbl2 sc1\n    s_waitcnt vmcnt(0)\n"
    s = HDR + prolog("k1_kernel") + load_x() + now(32) + scatter(YOFF, 32, "") + signal(0, rel) + now(50)
    s += wf(0, "Lg2", sleep) + now(52) + "    s_mov_b32 s40, s29\n" + gather(YOFF, False, "Lh2", "sc1") + now(34) + scatter(ZOFF, 32, "") + signal(1, rel)
    s += wf(1, "Lg3", sleep) + "    s_mov_b32 s41, s29\n" + gather(ZOFF, False, "Lh3", "sc1") + now(36) + fin()
    return s
def multi_g():
    h = "".join(f"; @launch kernel=k{i}_kernel grid=(256,1,1) block=(256,1,1) lds=0\n" for i in (1,2,3))
    h += '.amdgcn_target "amdgcn-amd-amdhsa--gfx950"\n.text\n'
    s = h
    s += prolog("k1_kernel") + load_x() + now(32) + outbox(YOFF, "") + "    s_waitcnt vmcnt(0)\n" + now(34) + stamp(0,30)+stamp(1,32)+stamp(2,34) + end("k1_kernel")
    s += prolog("k2_kernel") + gather_plain(YOFF, "") + now(32) + outbox(ZOFF, "") + "    s_waitcnt vmcnt(0)\n" + now(34) + stamp(3,30)+stamp(4,32)+stamp(5,34) + end("k2_kernel")
    s += prolog("k3_kernel") + gather_plain(ZOFF, "") + now(32) + store_out() + "    s_waitcnt vmcnt(0)\n" + now(34) + stamp(6,30)+stamp(7,32)+stamp(8,34) + end("k3_kernel")
    return s
W = lambda n, s: open(f"mb2_{n}.s","w").write(s)
W("v1a", v1(1)); W("v1b", v1(8)); W("v2a", v2(1, waitflags)); W("v2b", v2(1, waitflags1)); W("v3a", v3(1, waitflags1)); W("mg", multi_g())
```

```python
import sys; sys.path.insert(0,"work")
from mb2 import *
def delay_until(base, ticks, lab):
    return f"""    s_add_u32 s54, s{base}, {ticks}
{lab}:
    s_memrealtime s[56:57]
    s_waitcnt lgkmcnt(0)
    s_sub_u32 s55, s56, s54
    s_cmp_lt_i32 s55, 0
    s_cbranch_scc1 {lab}
"""
def v6(d1, d2):
    s = HDR + prolog("k1_kernel") + load_x() + now(32) + outbox(YOFF, "sc1") + now(50) + delay_until(30, d1, "Ld1") + now(52)
    s += gather_tag(YOFF, "Lg2", "sc1", 1) + "    s_mov_b32 s40, s29\n" + now(34) + outbox(ZOFF, "sc1") + delay_until(30, d2, "Ld2")
    s += gather_tag(ZOFF, "Lg3", "sc1", 1) + "    s_mov_b32 s41, s29\n" + now(36) + fin()
    return s
def v6s(d1, d2):
    s = HDR + prolog("k1_kernel") + load_x() + now(32) + scatter(YOFF, 32, "sc1") + now(50) + delay_until(30, d1, "Ld1") + now(52)
    s += gather(YOFF, True, "Lg2", "sc1") + "    s_mov_b32 s40, s29\n" + now(34) + scatter(ZOFF, 32, "sc1") + delay_until(30, d2, "Ld2")
    s += gather(ZOFF, True, "Lg3", "sc1") + "    s_mov_b32 s41, s29\n" + now(36) + fin()
    return s
RSTR = 4352
def signalR(ph, R):
    return f"""    s_waitcnt vmcnt(0)
    s_barrier
    s_lshl_b32 s25, s3, 2
    s_add_u32 s25, s25, {FLAG + ph*(1<<20)}
    v_mov_b32 v40, 0x12345678
    v_mul_u32_u24 v41, {RSTR}, v0
    v_cmp_gt_u32 vcc, {R}, v0
    s_and_saveexec_b64 s[26:27], vcc
    s_cbranch_execz Lsig{ph}
    buffer_store_dword v40, v41, s[20:23], s25 offen sc1
Lsig{ph}:
    s_mov_b64 exec, s[26:27]
"""
def waitR(ph, lab, sleep, R):
    return f"""    v_readfirstlane_b32 s48, v0
    s_mov_b32 s29, 0
    s_cmp_ge_u32 s48, 64
    s_cbranch_scc1 {lab}_y
    v_and_b32 v1, 63, v0
    v_lshlrev_b32 v1, 4, v1
    s_and_b32 s25, s2, {R-1}
    s_mul_i32 s25, s25, {RSTR}
    s_add_u32 s25, s25, {FLAG + ph*(1<<20)}
    v_mov_b32 v12, 0x12345678
{lab}:
    buffer_load_dwordx4 v[16:19], v1, s[20:23], s25 offen sc1
    s_waitcnt vmcnt(0)
    v_xor_b32 v16, v16, v12
    v_xor_b32 v17, v17, v12
    v_xor_b32 v18, v18, v12
    v_xor_b32 v19, v19, v12
    v_or_b32 v16, v16, v17
    v_or3_b32 v16, v16, v18, v19
    v_cmp_ne_u32 vcc, 0, v16
    s_add_u32 s29, s29, 1
    s_cmp_gt_u32 s29, 20000
    s_cbranch_scc1 {lab}_y
    s_cbranch_vccz {lab}_y
    s_sleep {sleep}
    s_branch {lab}
{lab}_y:
    s_barrier
"""
def v4(R, sleep):
    s = HDR + prolog("k1_kernel") + load_x() + now(32) + outbox(YOFF, "sc1") + signalR(0, R) + now(50)
    s += waitR(0, "Lg2", sleep, R) + now(52) + "    s_mov_b32 s40, s29\n" + gather_plain(YOFF, "sc1") + now(34) + outbox(ZOFF, "sc1") + signalR(1, R)
    s += waitR(1, "Lg3", sleep, R) + "    s_mov_b32 s41, s29\n" + gather_plain(ZOFF, "sc1") + now(36) + fin()
    return s
def signalA(ph, R):
    return f"""    s_waitcnt vmcnt(0)
    s_barrier
    s_mov_b32 s25, {FLAG + ph*(1<<20)}
    v_mov_b32 v40, 1
    v_mul_u32_u24 v41, {RSTR}, v0
    v_cmp_gt_u32 vcc, {R}, v0
    s_and_saveexec_b64 s[26:27], vcc
    s_cbranch_execz Lsig{ph}
    buffer_atomic_add v40, v41, s[20:23], s25 offen sc1
Lsig{ph}:
    s_mov_b64 exec, s[26:27]
"""
def waitA(ph, lab, sleep, R):
    return f"""    v_readfirstlane_b32 s48, v0
    s_mov_b32 s29, 0
    s_cmp_ge_u32 s48, 64
    s_cbranch_scc1 {lab}_y
    v_mov_b32 v1, 0
    s_and_b32 s25, s2, {R-1}
    s_mul_i32 s25, s25, {RSTR}
    s_add_u32 s25, s25, {FLAG + ph*(1<<20)}
    v_mov_b32 v12, 256
{lab}:
    buffer_load_dword v16, v1, s[20:23], s25 offen sc1
    s_waitcnt vmcnt(0)
    v_cmp_ne_u32 vcc, v12, v16
    s_add_u32 s29, s29, 1
    s_cmp_gt_u32 s29, 50
    s_cbranch_scc1 {lab}_y
    s_cbranch_vccz {lab}_y
    s_sleep {sleep}
    s_branch {lab}
{lab}_y:
    s_barrier
"""
def v5(R, sleep):
    s = HDR + prolog("k1_kernel") + load_x() + now(32) + outbox(YOFF, "sc1") + signalA(0, R) + now(50)
    s += waitA(0, "Lg2", sleep, R) + now(52) + "    s_mov_b32 s40, s29\n" + gather_plain(YOFF, "sc1") + now(34) + outbox(ZOFF, "sc1") + signalA(1, R)
    s += waitA(1, "Lg3", sleep, R) + "    s_mov_b32 s41, s29\n" + gather_plain(ZOFF, "sc1") + now(36) + fin()
    return s
W = lambda n, s: open(f"mb3_{n}.s","w").write(s)
W("v6a", v6(230, 400)); W("v6b", v6(260, 440)); W("v6s", v6s(260, 460)); W("v4r8", v4(8,1)); W("v4r32", v4(32,1)); W("v5r8", v5(8,1)); W("v5r32", v5(32,1))
```

```python
import sys; sys.path.insert(0,"work")
from mb3 import *
def addr(kind, off, CH, SL, RS, N):
    lpc = CH//16; sh = {1:0,2:1,4:2}[lpc]
    per = 256//lpc
    s = f"    v_lshrrev_b32 v1, {sh}, v0\n    v_and_b32 v2, {lpc-1}, v0\n    v_lshlrev_b32 v2, 4, v2\n"
    if kind == "own":
        s += f"    v_mul_u32_u24 v1, {SL}, v1\n    v_add_u32 v1, v1, v2\n    s_mul_i32 s25, s3, {RS}\n    s_add_u32 s58, s25, {off}\n"
        step = per*SL
    else:
        s += f"    v_mul_u32_u24 v1, {RS}, v1\n    v_add_u32 v1, v1, v2\n    s_mul_i32 s25, s3, {SL}\n    s_add_u32 s58, s25, {off}\n"
        step = per*RS
    n1 = 256//per
    for i in range(1, N):
        s += f"    s_add_u32 s{58+i}, s58, {(i % n1)*step + (i//n1)*(32<<20)}\n"
    return s
def st(kind, off, CH, SL, RS, N, tag):
    s = "".join(f"    v_mov_b32 v{4+4*i}, {tag}\n" for i in range(N)) + addr(kind, off, CH, SL, RS, N)
    s += "".join(f"    buffer_store_dwordx4 v[{4+4*i}:{7+4*i}], v1, s[20:23], s{58+i} offen sc1\n" for i in range(N))
    return s
def ld(kind, off, CH, SL, RS, N, lab, tag):
    s = addr(kind, off, CH, SL, RS, N) + f"    s_mov_b32 s29, 0\n{lab}:\n"
    s += "".join(f"    buffer_load_dwordx4 v[{4+4*i}:{7+4*i}], v1, s[20:23], s{58+i} offen sc1\n" for i in range(N))
    s += "    s_waitcnt vmcnt(0)\n    v_mov_b32 v44, 0\n"
    for i in range(N): s += f"    v_xor_b32 v45, {tag}, v{4+4*i}\n    v_or_b32 v44, v44, v45\n"
    s += f"""    v_cmp_ne_u32 vcc, 0, v44
    s_add_u32 s29, s29, 1
    s_cmp_gt_u32 s29, 2000
    s_cbranch_scc1 {lab}_x
    s_cbranch_vccnz {lab}
{lab}_x:
    s_barrier
"""
    return s
def fin2():
    return now(38) + stamp(0,30)+stamp(1,32)+stamp(4,34)+stamp(7,36)+stamp(8,38)+stamp(9,40)+stamp(10,41)+stamp(2,50)+stamp(3,52)+stamp(5,70)+stamp(6,72) + "L_k1_kernel_end:\n    s_endpgm\n" + kd("k1_kernel", 64, 96)
def mk(k1, k2, CH1, CH2, SL, RS, mult, d1=350, d2=700):
    o = {"own":"rem","rem":"own"}
    N1 = CH1//16*mult; N2 = CH2//16*mult
    s = HDR + prolog("k1_kernel") + load_x() + "    s_barrier\n" + now(32) + st(k1, 0, CH1, SL, RS, N1, "0x12345678") + "    s_waitcnt vmcnt(0)\n    s_barrier\n" + now(50) + delay_until(30, d1, "Ld1") + now(52)
    s += ld(o[k1], 0, CH1, SL, RS, N1, "Lg2", "0x12345678") + "    s_mov_b32 s40, s29\n" + now(34) + st(k2, 0 if k1 != k2 else (8<<20), CH2, SL, RS, N2, "0x22345678") + "    s_waitcnt vmcnt(0)\n    s_barrier\n" + now(70) + delay_until(30, d2, "Ld2") + now(72)
    s += ld(o[k2], 0 if k1 != k2 else (8<<20), CH2, SL, RS, N2, "Lg3", "0x22345678") + "    s_mov_b32 s41, s29\n" + now(36) + fin2()
    return s
names = {
 "a": mk("rem","own",64,64,64,16384,1), "b": mk("rem","own",64,64,64,16640,1), "c": mk("rem","own",64,64,64,16384+4352,1),
 "d": mk("rem","own",64,64,64,16384,2), "e": mk("rem","own",64,64,64,16640,2), "f": mk("own","own",64,64,64,16640,2),
 "g": mk("rem","own",64,32,64,16640,2), "h": mk("rem","own",32,32,32,8448,2), "i": mk("own","own",32,32,32,8448,2)}
for n,s in names.items(): open(f"mb16_{n}.s","w").write(s)
print(" ".join(f"work/mb16_{n}.s" for n in names))
print(", ".join(f'"work/mb16_{n}.s"' for n in names))
```

```python
import sys; sys.path.insert(0,"work")
from mb1 import *
def stampw(slot, reg, tid):
    return f"""    s_lshl_b32 s25, s2, 6
    s_add_u32 s25, s25, {STAMP + slot*4}
    v_mov_b32 v40, s{reg}
    v_mov_b32 v41, 0
    v_cmp_eq_u32 vcc, {tid}, v0
    s_and_saveexec_b64 s[26:27], vcc
    s_cbranch_execz Lst{slot}
    buffer_store_dword v40, v41, s[20:23], s25 offen
Lst{slot}:
    s_mov_b64 exec, s[26:27]
"""
def mk(clear, ucol, xcdmap, params):
    s = "; @launch kernel=k1_kernel grid=(256,1,1) block=(768,1,1) lds=0\n" + '.amdgcn_target "amdgcn-amd-amdhsa--gfx950"\n.text\n'
    s += prolog("k1_kernel")
    s += """    v_readfirstlane_b32 s48, v0
    s_lshr_b32 s48, s48, 8
    s_cmp_eq_u32 s48, 1
    s_cbranch_scc1 Lclr
    s_cmp_eq_u32 s48, 2
    s_cbranch_scc1 Lcol
"""
    s += load_x() + now(32) + "    s_branch Ljoin\nLclr:\n"
    if clear:
        s += f"""    v_mov_b32 v20, -1
    v_mov_b32 v21, -1
    v_mov_b32 v22, -1
    v_mov_b32 v23, -1
    v_and_b32 v24, 255, v0
    v_lshlrev_b32 v24, 4, v24
    s_lshl_b32 s25, s3, 14
    s_add_u32 s58, s25, 4096
    s_add_u32 s59, s25, 8192
    s_add_u32 s60, s25, 12288
    buffer_store_dwordx4 v[20:23], v24, s[20:23], s25 offen sc1
    buffer_store_dwordx4 v[20:23], v24, s[20:23], s58 offen sc1
    buffer_store_dwordx4 v[20:23], v24, s[20:23], s59 offen sc1
    buffer_store_dwordx4 v[20:23], v24, s[20:23], s60 offen sc1
    s_waitcnt vmcnt(0)
"""
    s += now(32) + "    s_branch Ljoin\nLcol:\n"
    if ucol:
        if xcdmap:
            s += """    s_and_b32 s50, s2, 7
    s_mul_i32 s50, s50, 28
    s_lshr_b32 s51, s2, 3
    s_add_u32 s50, s50, s51
    s_cmp_ge_u32 s51, 28
    s_cbranch_scc1 Lnocol
"""
        else:
            s += """    s_mov_b32 s50, s2
    s_cmp_ge_u32 s2, 224
    s_cbranch_scc1 Lnocol
"""
        s += """    s_lshl_b32 s50, s50, 2
    v_and_b32 v1, 255, v0
    v_mul_u32_u24 v1, 896, v1
"""
        for i in range(8):
            s += f"    s_add_u32 s51, s50, {i*256*896}\n    buffer_load_dword v{4+i}, v1, s[12:15], s51 offen\n"
        s += "    s_waitcnt vmcnt(0)\nLnocol:\n"
    s += now(32) + "Ljoin:\n"
    s += stampw(0,30,0)+stampw(1,32,0)+stampw(2,32,192)+stampw(3,32,256)+stampw(4,32,448)+stampw(5,32,512)+stampw(6,32,704)
    s += "L_k1_kernel_end:\n    s_endpgm\n" + kd("k1_kernel", 64, 80)
    return s
names = {"x":mk(0,0,0,0), "xc":mk(1,0,0,0), "xu":mk(0,1,1,0), "xun":mk(0,1,0,0), "xcu":mk(1,1,1,0)}
for n,s in names.items(): open(f"mb9_{n}.s","w").write(s)
print(" ".join(f"work/mb9_{n}.s" for n in names))
print(", ".join(f'"work/mb9_{n}.s"' for n in names))
```

```python
import sys; sys.path.insert(0,"work")
from mb3 import *
from mb9 import stampw
def mk(ncold, store):
    s = "; @launch kernel=k1_kernel grid=(256,1,1) block=(128,1,1) lds=0\n" + '.amdgcn_target "amdgcn-amd-amdhsa--gfx950"\n.text\n'
    s += prolog("k1_kernel")
    s += f"""    v_readfirstlane_b32 s48, v0
    v_and_b32 v1, 63, v0
    v_lshlrev_b32 v1, 4, v1
    s_mov_b32 s40, {64<<20}
    buffer_load_dwordx4 v[4:7], v1, s[20:23], s40 offen sc1
    s_waitcnt vmcnt(0)
""" + delay_until(30, 200, "Ld1") + "    s_barrier\n" + """    s_cmp_ge_u32 s48, 64
    s_cbranch_scc1 Lw1
""" + f"    s_mul_i32 s41, s2, {65536}\n    s_add_u32 s41, s41, {96<<20}\n" + now(32)
    for i in range(ncold): s += f"    s_add_u32 s42, s41, {i*1024}\n    buffer_load_dwordx4 v[{8+4*(i%8)}:{11+4*(i%8)}], v1, s[20:23], s42 offen nt\n"
    s += "    s_waitcnt vmcnt(0)\n" + now(34) + "    s_branch Lj\nLw1:\n    s_sleep 6\n" + now(32)
    if store: s += f"    s_lshl_b32 s41, s2, 10\n    s_add_u32 s41, s41, {128<<20}\n    buffer_store_dwordx4 v[4:7], v1, s[20:23], s41 offen\n"
    else: s += "    buffer_load_dwordx4 v[4:7], v1, s[20:23], s40 offen sc1\n"
    s += "    s_waitcnt vmcnt(0)\n" + now(34) + "Lj:\n"
    s += stampw(0,32,0)+stampw(1,34,0)+stampw(2,32,64)+stampw(3,34,64) + "L_k1_kernel_end:\n    s_endpgm\n" + kd("k1_kernel", 64, 80)
    return s
names = {"0":mk(0,0), "1":mk(1,0), "8":mk(8,0), "32":mk(32,0), "s0":mk(0,1), "s8":mk(8,1), "s32":mk(32,1)}
for n,s in names.items(): open(f"mb23_{n}.s","w").write(s)
print(" ".join(f"work/mb23_{n}.s" for n in names)); print(", ".join(f'"work/mb23_{n}.s"' for n in names))
```
